```python
import torch

def _softmax(x, axis=-1):
    return torch.softmax(x, dim=axis)
def _gelu(x):
    return torch.nn.functional.gelu(x, approximate="tanh")
def _silu(x):
    return torch.nn.functional.silu(x)
def _sigmoid(x):
    return torch.sigmoid(x)
def _layernorm(x, axis=-1, eps=1e-5):
    m = x.mean(dim=axis, keepdim=True)
    v = x.var(dim=axis, keepdim=True, unbiased=False)
    return (x - m) / torch.sqrt(v + eps)
def _scatter_add(tgt, idx, src, axis=0):
    return tgt.clone().index_add_(axis, idx, src)
def _segment_sum(src, seg, n):
    out = torch.zeros((n,) + src.shape[1:], dtype=src.dtype)
    return out.index_add_(0, seg, src)
def _pad(x, pw):
    flat = tuple(v for pair in reversed(pw) for v in pair)
    return torch.nn.functional.pad(x, flat)

kernel_name = 'concat_heads__gqa_block_cached__mha_block_cached__near_ridge'

def setup_inputs():

    _w = (lambda a: (lambda t: t.to(torch.bfloat16) if t.is_floating_point() else t)(torch.as_tensor(a)))
    def _A_setup():
        B, Sq, D = 32, 32, 448
        Hq, Hkv, Sk, Dh = 16, 8, 32, 256
        assert Hq % Hkv == 0, (Hq, Hkv)
        return {
            "x": _w((lambda *s: torch.randn(*s, dtype=torch.bfloat16) * 0.8)(B, Sq, D)),
            "k_cache": _w((lambda *s: torch.randn(*s, dtype=torch.bfloat16) * 0.8)(B, Hkv, Sk, Dh)),
            "v_cache": _w((lambda *s: torch.randn(*s, dtype=torch.bfloat16) * 0.05)(B, Hkv, Sk, Dh)),
            "wq": _w((lambda *s: torch.randn(*s, dtype=torch.bfloat16) * 0.8)(D, Hq * Dh) * (D ** -0.5)),
            "wo": _w((lambda *s: torch.randn(*s, dtype=torch.bfloat16) * 0.05)(Hq * Dh, D) * ((Hq * Dh) ** -0.5)),
        }
    _A_in = _A_setup()

    def _B_setup():
        B, Sq, D = 32, 32, 448
        H, Sk, Dh = 16, 32, 256
        return {
            "x": _w((lambda *s: torch.randn(*s, dtype=torch.bfloat16) * 0.8)(B, Sq, D)),
            "k_cache": _w((lambda *s: torch.randn(*s, dtype=torch.bfloat16) * 0.8)(B, H, Sk, Dh)),
            "v_cache": _w((lambda *s: torch.randn(*s, dtype=torch.bfloat16) * 0.05)(B, H, Sk, Dh)),
            "wq": _w((lambda *s: torch.randn(*s, dtype=torch.bfloat16) * 0.8)(D, H * Dh) * (D ** -0.5)),
            "wo": _w((lambda *s: torch.randn(*s, dtype=torch.bfloat16) * 0.05)(H * Dh, D) * ((H * Dh) ** -0.5)),
        }
    _B_in = _B_setup()

    return {
        "A_x": _A_in["x"],
        "A_k_cache": _A_in["k_cache"],
        "A_v_cache": _A_in["v_cache"],
        "A_wq": _A_in["wq"],
        "A_wo": _A_in["wo"],
        "B_x": _B_in["x"],
        "B_k_cache": _B_in["k_cache"],
        "B_v_cache": _B_in["v_cache"],
        "B_wq": _B_in["wq"],
        "B_wo": _B_in["wo"],
    }

def reference(A_x, A_k_cache, A_v_cache, A_wq, A_wo, B_x, B_k_cache, B_v_cache, B_wq, B_wo):
    def _A_ref(x, k_cache, v_cache, wq, wo):
        B, Sq, D = x.shape
        Hq, Dh = 16, 256
        Hkv = k_cache.shape[1]
        rep = Hq // Hkv
        q = (lambda x, *d: x.permute(*d))((x @ wq).reshape(B, Sq, Hq, Dh), 0, 2, 1, 3)
        k = (lambda x, n, axis: torch.repeat_interleave(x, n, dim=axis))(k_cache, rep, axis=1)
        v = (lambda x, n, axis: torch.repeat_interleave(x, n, dim=axis))(v_cache, rep, axis=1)
        scores = torch.einsum("bhqd,bhkd->bhqk", q, k) * (Dh ** -0.5)
        p = _softmax(scores, axis=-1)
        o = torch.einsum("bhqk,bhkd->bhqd", p, v)
        return (lambda x, *d: x.permute(*d))(o, 0, 2, 1, 3).reshape(B, Sq, Hq * Dh) @ wo

    def _B_ref(x, k_cache, v_cache, wq, wo):
        B, Sq, D = x.shape
        H, Dh = 16, 256
        q = (lambda x, *d: x.permute(*d))((x @ wq).reshape(B, Sq, H, Dh), 0, 2, 1, 3)
        scores = torch.einsum("bhqd,bhkd->bhqk", q, k_cache) * (Dh ** -0.5)
        p = _softmax(scores, axis=-1)
        o = torch.einsum("bhqk,bhkd->bhqd", p, v_cache)
        return (lambda x, *d: x.permute(*d))(o, 0, 2, 1, 3).reshape(B, Sq, H * Dh) @ wo

    a = _A_ref(A_x, A_k_cache, A_v_cache, A_wq, A_wo)
    b = _B_ref(B_x, B_k_cache, B_v_cache, B_wq, B_wo)
    return torch.concatenate([a, b], axis=-1)
```

```python
import re
def regs(tok):
    tok = tok.strip()
    m = re.fullmatch(r"-?\|?([vsa])(\d+)\|?", tok)
    if m: return m.group(1), {int(m.group(2))}
    m = re.fullmatch(r"-?([vsa])\[(\d+):(\d+)\]", tok)
    if m: return m.group(1), set(range(int(m.group(2)), int(m.group(3))+1))
    if tok == "vcc": return "s", {"vcc"}
    if tok == "m0": return "s", {"m0"}
    if tok == "exec": return "s", {"exec"}
    return None, set()
TRANS = ("v_exp_f32","v_log_f32","v_rcp_f32","v_rsq_f32","v_sqrt_f32")
class I:
    def __init__(s, text):
        s.text = text
        t = text.split(";")[0].strip()
        s.op = t.split()[0] if t else ""
        rest = t[len(s.op):].strip()
        ops = [x.strip() for x in rest.split(",")] if rest else []
        if ops:
            parts = ops[-1].split()
            ops[-1] = parts[0]; s.mods = parts[1:]
        else: s.mods = []
        s.ops = ops
        s.vw=set(); s.vr=set(); s.sw=set(); s.sr=set()
        op = s.op
        s.kind = "other"
        def rd(tok):
            k, r = regs(tok)
            if k == "v": s.vr |= r
            elif k == "s": s.sr |= r
        def wr(tok):
            k, r = regs(tok)
            if k == "v": s.vw |= r
            elif k == "s": s.sw |= r
        if op.endswith(":"): s.kind = "label"
        elif op.startswith("v_mfma"):
            s.kind = "mfma"; s.passes = 4 if "16x16x32" in op else 8
            wr(ops[0]); s.D = regs(ops[0])[1]; s.AB = regs(ops[1])[1] | regs(ops[2])[1]; s.C = regs(ops[3])[1]
            for o in ops[1:]: rd(o)
        elif op.startswith("v_permlane") and "swap" in op:
            s.kind = "valu"; s.perm = True
            for o in ops: rd(o); wr(o)
        elif op.startswith("v_cmp"):
            s.kind = "valu"; wr(ops[0]); [rd(o) for o in ops[1:]]
        elif op == "v_writelane_b32":
            s.kind = "valu"; wr(ops[0]); [rd(o) for o in ops]
        elif op in ("v_readfirstlane_b32","v_readlane_b32"):
            s.kind = "valu"; s.rfl = True; wr(ops[0]); [rd(o) for o in ops[1:]]
        elif op.startswith("v_"):
            s.kind = "trans" if op in TRANS else "valu"
            wr(ops[0]); [rd(o) for o in ops[1:]]
            if op.startswith("v_fmac") or op.startswith("v_dot2c"): rd(ops[0])
        elif op.startswith("ds_read"):
            s.kind = "dsr"; wr(ops[0]); rd(ops[1])
        elif op.startswith("ds_write"):
            s.kind = "dsw"; [rd(o) for o in ops]
        elif op.startswith("buffer_load") or op.startswith("global_load"):
            if "lds" in s.mods:
                s.kind = "dma"; [rd(o) for o in ops]; s.sr.add("m0")
            else:
                s.kind = "vld"; wr(ops[0]); [rd(o) for o in ops[1:]]
        elif op.startswith("buffer_store") or op.startswith("global_store"):
            s.kind = "vst"; [rd(o) for o in ops]
            s.wide = op.endswith("x4") or op.endswith("x3")
            s.data = regs(ops[0] if op.startswith("buffer") else ops[1])[1]
        elif op == "s_nop": s.kind = "nop"; s.n = int(ops[0])+1
        elif op == "s_waitcnt": s.kind = "wait"
        elif op == "s_barrier": s.kind = "bar"
        elif op.startswith("s_cbranch") or op == "s_branch": s.kind = "br"
        elif op.startswith("s_load") or op.startswith("s_mem"):
            s.kind = "smem"; wr(ops[0]); [rd(o) for o in ops[1:]]
        elif op.startswith("s_cmp"):
            s.kind = "salu"; [rd(o) for o in ops]
        elif op.startswith("s_"):
            s.kind = "salu"
            if ops: wr(ops[0]); [rd(o) for o in ops[1:]]
    def states(s): return s.n if s.kind == "nop" else (0 if s.kind == "label" else 1)
    def isvalu(s): return s.kind in ("valu","trans")

def need(p, c):
    n = 0
    cv = c.vr | c.vw
    if p.isvalu():
        if c.kind == "mfma" and (p.vw & c.vr): n = max(n, 2)
        if getattr(c, "perm", False) and (p.vw & c.vr): n = max(n, 2)
        if getattr(c, "rfl", False) and (p.vw & c.vr): n = max(n, 1)
        if p.kind == "trans" and c.isvalu() and (p.vw & c.vr): n = max(n, 1)
        if p.sw & c.sr:
            if c.isvalu() or c.kind == "mfma": n = max(n, 2)
            if c.kind in ("vld","vst","dma"): n = max(n, 5)
            if c.kind == "salu" : n = max(n, 1)
    if p.kind == "mfma":
        big = {4: 8, 8: 12}[p.passes]; ov = {4: 6, 8: 10}[p.passes]; war = {4: 3, 8: 7}[p.passes]
        if c.kind == "mfma":
            if p.D & c.AB: n = max(n, big)
            if (p.D & c.C) and not (p.D == c.C and p.passes == c.passes): n = max(n, ov)
            if (p.D & c.D) and not (p.D == c.C) and not (p.D == c.D): n = max(n, ov)
        elif c.isvalu():
            if p.D & cv: n = max(n, big)
            if p.C & c.vw: n = max(n, war)
        elif c.kind in ("dsr","dsw","vld","vst","dma"):
            if p.D & cv: n = max(n, big)
    if p.kind == "vst" and p.wide and (p.data & c.vw):
        n = max(n, 2)
    if p.kind == "salu" and "m0" in p.sw and c.kind == "dma": n = max(n, 1)
    return n

class Stream:
    def __init__(s):
        s.ins = []
        s.lds = []
        s.vm = []
        s.nnop = 0; s.nwait = 0
    def _push(s, i):
        dist = 0; req = 0
        for p in reversed(s.ins):
            if dist >= 20: break
            r = need(p, i) - dist
            if r > req: req = r
            dist += p.states()
        if req > 0:
            s.nnop += 1
            while req > 0:
                k = min(req, 16); s.ins.append(I(f"s_nop {k-1}")); req -= k
        s.ins.append(i)
    def raw(s, text):
        for t in text.split("\n"):
            t = t.strip()
            if t: s._push(I(t))
    def __call__(s, text, tag=None):
        for t in text.split("\n"):
            t = t.strip()
            if not t: continue
            i = I(t)
            touch = i.vr | i.vw
            k = -1
            for j, d in enumerate(s.lds):
                if d & touch: k = j
            kv = -1
            for j, (tg, d) in enumerate(s.vm):
                if d & touch: kv = j
            w = []
            if kv >= 0:
                n = len(s.vm) - kv - 1; w.append(f"vmcnt({min(n,63)})"); s.vm = s.vm[len(s.vm)-min(n,63):] if n else []
            if k >= 0:
                n = min(len(s.lds) - k - 1, 15); w.append(f"lgkmcnt({n})"); s.lds = s.lds[len(s.lds)-n:] if n else []
            if w:
                s.nwait += 1; s._push(I("s_waitcnt " + " ".join(w)))
            if i.kind == "wait":
                m = re.search(r"lgkmcnt\((\d+)\)", t)
                if m:
                    n = int(m.group(1)); s.lds = s.lds[len(s.lds)-n:] if n and n < len(s.lds) else ([] if n == 0 else s.lds)
                m = re.search(r"vmcnt\((\d+)\)", t)
                if m:
                    n = int(m.group(1)); s.vm = s.vm[len(s.vm)-n:] if n and n < len(s.vm) else ([] if n == 0 else s.vm)
            s._push(i)
            if i.kind == "dsr": s.lds.append(set(i.vw))
            elif i.kind == "dsw": s.lds.append({tag} if tag else set())
            elif i.kind in ("vld",): s.vm.append((tag, set(i.vw)))
            elif i.kind in ("vst","dma"): s.vm.append((tag, set()))
    def wait_vm_tags(s, tags):
        k = -1
        for j, (tg, d) in enumerate(s.vm):
            if tg in tags: k = j
        if k >= 0:
            n = len(s.vm) - k - 1
            assert n <= 63, n
            s(f"s_waitcnt vmcnt({n})")
    def wait_lds_tag(s, tag):
        k = -1
        for j, d in enumerate(s.lds):
            if tag in d: k = j
        if k >= 0:
            s(f"s_waitcnt lgkmcnt({min(len(s.lds)-k-1, 15)})")
    def text(s):
        return "\n".join((i.text if i.kind == "label" else "    " + i.text) for i in s.ins)
```

```python
import sys, json
from isa import Stream, I
NAME = "concat_heads__gqa_block_cached__mha_block_cached__near_ridge_kernel"
HEADER = open("concat_heads__gqa_block_cached__mha_block_cached__near_ridge.s.ref").read().split("; @launch")[0]

DEF = dict(D=3, PD=2, rot1=0, rot2=0, pW="", pX="", pK="nt", pV="", pO="", ksched={3:[0,1],6:[2,3]}, kbar=13,
           wsoff=0, stamps=0, prefetch_code=0, prio=0, xmap=0, budget=2)

LW, LX, LK = 0, 65536, 98304
LP = LK + 16384
EPOCH, PFLAG, RFLAG, STAMP, PBUF, MBOX, WSSZ = 0, 0x1000, 0x10000, 0x20000, 0x100000, 0x400000, 0x1400000
SPIN = 200000
sWAVE, sBR, sHG, sBG, sHH, sH, sBST, sKVS = 30, 31, 32, 33, 34, 35, 36, 37
sW, sX, sK, sV, sO, sWS, sOUT = 40, 44, 48, 52, 56, 60, 64
sNONCE = 68
MF = "v_mfma_f32_16x16x32_bf16"
def vr(a, n=4): return f"v[{a}:{a+n-1}]"

def sched(st, mf, items, budget):
    heads = [0]*len(items)
    n = len(mf)
    def emit(x):
        if callable(x): x()
        else: st(x)
    for p in range(-1, n):
        if p >= 0: st(mf[p])
        room = budget(p) if p >= 0 else 10**9
        while True:
            best = None
            for ci, ch in enumerate(items):
                if heads[ci] < len(ch):
                    r, d, x, c = ch[heads[ci]]
                    dd = min(e[1] for e in ch[heads[ci]:])
                    if r <= p and (best is None or dd < best[0]): best = (dd, ci)
            if best is None: break
            dd, ci = best
            r, d, x, c = items[ci][heads[ci]]
            if p == -1 and dd > 0 and r > -1: break
            if room < c and dd > p+1 and p < n-1: break
            if p == -1 and dd > 8: break
            emit(x); room -= c; heads[ci] += 1
    for ci, ch in enumerate(items):
        assert heads[ci] == len(ch), ("unscheduled", ch[heads[ci]])

def gen(**kw):
    P = dict(DEF); P.update(kw)
    D, PD = P["D"], P["PD"]
    stamps = P["stamps"]
    out = []
    c = Stream()
    c("s_cmp_ge_u32 s2, 256\ns_cbranch_scc1 L_end")
    if stamps: c("s_memrealtime s[70:71]")
    c("s_load_dwordx16 s[4:19], s[0:1], 0\ns_load_dwordx8 s[20:27], s[0:1], 64\ns_load_dwordx2 s[28:29], s[0:1], 96")
    c(f"v_lshrrev_b32 v1, 6, v0\nv_and_b32 v2, 63, v0\nv_readfirstlane_b32 s{sWAVE}, v1")
    if P["xmap"] == 0:
        c(f"s_and_b32 s{sBR}, s2, 1\ns_bfe_u32 s{sHG}, s2, 0x20001")
    else:
        c(f"s_bfe_u32 s{sBR}, s2, 0x10002\ns_and_b32 s{sHG}, s2, 3")
    c(f"s_lshr_b32 s{sBG}, s2, 5\ns_bfe_u32 s{sHH}, s2, 0x20003\ns_lshl_b32 s{sH}, s{sHG}, 2\ns_add_u32 s{sH}, s{sH}, s{sHH}")
    c(f"s_lshl_b32 s{sBST}, 0x20000, s{sBR}\ns_sub_u32 s{sKVS}, 1, s{sBR}")
    c(f"s_cmp_ge_u32 s{sWAVE}, 4\ns_cbranch_scc1 L_loader")
    out.append(c.text())

    def ws_srd(s):
        s(f"s_add_u32 s{sWS}, s28, {P['wsoff']}\ns_addc_u32 s{sWS+1}, s29, 0\ns_and_b32 s{sWS+1}, s{sWS+1}, 0xffff\ns_mov_b32 s{sWS+2}, {WSSZ}\ns_mov_b32 s{sWS+3}, 0x20000")
    def load_nonce(s):
        s(f"s_lshl_b32 s3, s{sBR}, 3\ns_add_u32 s3, s3, s{sBG}\ns_lshl_b32 s3, s3, 7\ns_add_u32 s38, s{sWS}, s3\ns_addc_u32 s39, s{sWS+1}, 0")
        if P['wsoff']: pass
        s(f"s_load_dword s{sNONCE}, s[38:39], {EPOCH}")
    def group_regs(s, sg, sm):
        s(f"s_lshl_b32 s{sg}, s{sBR}, 3\ns_add_u32 s{sg}, s{sg}, s{sBG}\ns_lshl_b32 s{sg}, s{sg}, 1\ns_and_b32 s3, s{sHH}, 1\ns_add_u32 s{sg}, s{sg}, s3")
        s(f"s_lshl_b32 s{sm}, s{sHG}, 1\ns_lshr_b32 s3, s{sHH}, 1\ns_add_u32 s{sm}, s{sm}, s3")
    def put_stamps(s, n, tmp):
        s("s_waitcnt lgkmcnt(0)")
        s(f"s_lshl_b32 s3, s2, 3\ns_add_u32 s3, s3, s{sWAVE}\ns_lshl_b32 s3, s3, 6\ns_add_u32 s3, s3, {STAMP}")
        s(f"v_cmp_eq_u32 vcc, 0, v2\nv_mov_b32 v{tmp+4}, 0x80000000\nv_cndmask_b32 v{tmp+4}, v{tmp+4}, 0, vcc".replace(", 0, vcc", ", v%d, vcc" % (tmp+5)).replace(f"v_mov_b32 v{tmp+4}, 0x8", f"v_mov_b32 v{tmp+5}, 0\nv_mov_b32 v{tmp+4}, 0x8"))
        for j in range(0, n, 2):
            for q in range(4): s(f"v_mov_b32 v{tmp+q}, s{70+2*j+q}")
            s(f"buffer_store_dwordx4 {vr(tmp)}, v{tmp+4}, s[{sWS}:{sWS+3}], s3 offen offset:{8*j}")

    s = Stream()
    vB0 = 3; aW = 8; aX = 16; AB = 20; BB = 36; F = 68
    if P["prio"]: s(f"s_setprio {P['prio']}")
    sBP, sDH, sT5, sG, sM, sO0, sO1, sF0, sF1, sPB, sPF = 4, 5, 6, 14, 15, 16, 17, 18, 19, 20, 21
    s(f"v_lshrrev_b32 v4, 4, v2\nv_bfe_u32 v5, v2, 2, 2\nv_and_b32 v6, 3, v2\nv_and_b32 v7, 15, v2")
    s(f"v_lshl_add_u32 v{vB0}, v4, 3, v5\nv_lshlrev_b32 v{vB0}, 9, v{vB0}\nv_lshl_add_u32 v{vB0}, v6, 3, v{vB0}\nv_lshl_add_u32 v{vB0}, v5, 5, v{vB0}")
    s(f"v_and_b32 v0, 1, v4\nv_lshl_add_u32 v{vB0}, v0, 7, v{vB0}")
    s("s_waitcnt lgkmcnt(0)")
    ws_srd(s); load_nonce(s)
    s(f"s_and_b32 s{sBP}, s{sWAVE}, 1\ns_lshr_b32 s{sDH}, s{sWAVE}, 1")
    s(f"s_lshl_b32 s3, s{sDH}, 8")
    for T in range(8):
        s(f"s_add_u32 s22, s3, {T<<5}\nv_xor_b32 v{aW+T}, s22, v{vB0}")
    s(f"v_lshrrev_b32 v0, 1, v7\nv_xor_b32 v0, v0, v4\nv_lshlrev_b32 v0, 4, v0\nv_lshl_add_u32 v0, v7, 7, v0")
    s(f"s_lshl_b32 s22, s{sBP}, 13\ns_lshl_b32 s23, s{sDH}, 12\ns_add_u32 s22, s22, s23\ns_add_u32 s22, s22, {LX}")
    s(f"v_add_u32 v{aX}, s22, v0\nv_xor_b32 v{aX+1}, 64, v{aX}\nv_xor_b32 v{aX+2}, 0x1000, v{aX}\nv_xor_b32 v{aX+3}, 0x1000, v{aX+1}")
    s(f"v_lshrrev_b32 v0, 1, v4\nv_xor_b32 v0, v0, v7\nv_lshlrev_b32 v0, 4, v0\nv_lshl_add_u32 v0, v7, 9, v0\nv_and_b32 v1, 1, v4\nv_lshl_add_u32 v0, v1, 3, v0")
    s(f"s_lshl_b32 s22, s{sBP}, 15\ns_lshl_b32 s23, s{sDH}, 8\ns_add_u32 s22, s22, s23\ns_add_u32 s22, s22, {LK}\nv_add_u32 v1, s22, v0")
    s(f"s_and_b32 s23, s{sHH}, 1\ns_lshl_b32 s23, s23, 6\ns_mul_i32 s{sT5}, s{sDH}, {7<<5}\ns_add_u32 s{sT5}, s{sT5}, s23")
    for t in range(1, 7): s(f"s_add_u32 s{sT5+t}, s{sT5}, {t<<5}")
    group_regs(s, sG, sM)
    s(f"s_lshl_b32 s22, s{sBP}, 2\ns_mul_i32 s23, s{sDH}, 3\ns_add_u32 s22, s22, s23\ns_xor_b32 s23, s22, 2\ns_lshl_b32 s3, s{sG}, 3\ns_add_u32 s22, s22, s3\ns_add_u32 s23, s23, s3")
    s(f"s_mul_i32 s3, s{sM}, 7168\ns_add_u32 s3, s3, {MBOX}\ns_mul_i32 s{sO0}, s22, 57344\ns_add_u32 s{sO0}, s{sO0}, s3\ns_mul_i32 s{sO1}, s23, 57344\ns_add_u32 s{sO1}, s{sO1}, s3")
    s(f"s_lshl_b32 s3, s{sM}, 2\ns_add_u32 s3, s3, {RFLAG}\ns_lshl_b32 s{sF0}, s22, 7\ns_add_u32 s{sF0}, s{sF0}, s3\ns_lshl_b32 s{sF1}, s23, 7\ns_add_u32 s{sF1}, s{sF1}, s3")
    s(f"s_lshl_b32 s22, s{sBP}, 1\ns_add_u32 s22, s22, s{sDH}\ns_lshl_b32 s{sPB}, s2, 13\ns_lshl_b32 s23, s22, 11\ns_add_u32 s{sPB}, s{sPB}, s23\ns_add_u32 s{sPB}, s{sPB}, {PBUF}")
    s(f"s_lshl_b32 s{sPF}, s2, 7\ns_lshl_b32 s23, s22, 2\ns_add_u32 s{sPF}, s{sPF}, s23\ns_add_u32 s{sPF}, s{sPF}, {PFLAG}")
    s(f"s_lshl_b32 s24, s22, 11\ns_add_u32 s24, s24, {LP}")

    accT = {0:128, 1:240, 2:144, 3:160, 4:176, 5:192, 6:208, 7:224}
    def acc1(T, qt): return accT[T] + 4*qt
    def accN(t, k4): return 128 + 16*t + 4*k4
    mf = []; items = []
    stepstart = {}; tilepos = []
    tiles = []
    for i in range(14):
        stepstart[i] = len(mf)
        for T in range(8):
            tiles.append((i, T, len(mf)))
            ab = AB + 4*((len(tiles)-1) % 4)
            for qt in range(4):
                cc = "0" if i == 0 else vr(acc1(T,qt))
                mf.append(f"{MF} {vr(acc1(T,qt))}, {vr(ab)}, {vr(BB+16*(i%2)+4*qt)}, {cc}")
    S0 = len(mf)
    SK, SS = 240, 160
    def kfr(l, kt, sx):
        j = sx*4 + l*2 + kt
        return F + 4*j if j < 15 else 4
    for sx in range(4):
        for l in (1, 0):
            for kt in range(2):
                for q2 in range(2):
                    d = (SK, SS)[l] + 8*kt + 4*q2
                    mf.append(f"{MF} {vr(d)}, {vr(kfr(l,kt,sx))}, {vr(acc1(2*sx, 2*l+q2))}, {'0' if sx == 0 else vr(d)}")
    for i in range(14, 30):
        stepstart[i] = len(mf)
        for t in range(7):
            tiles.append((i, t, len(mf)))
            ab = AB + 4*((len(tiles)-1) % 4)
            for k4 in range(4):
                cc = "0" if i in (14, 22) else vr(accN(t,k4))
                mf.append(f"{MF} {vr(accN(t,k4))}, {vr(BB+16*(i%2)+4*k4)}, {vr(ab)}, {cc}")
    E0 = len(mf)
    PR = {(0,0): 240, (0,1): 248, (1,0): BB, (1,1): BB+8}
    NA = lambda l, t: F + 4*(l*7 + t)
    groups = [(l, t) for l in range(2) for t in range(7)]
    DB = [AB, AB+8]
    for gi, (l, t) in enumerate(groups):
        d = DB[gi % 2]
        mf.append(f"{MF} {vr(d)}, {vr(NA(l,t))}, {vr(PR[l,0])}, 0")
        mf.append(f"{MF} {vr(d+4)}, {vr(NA(l,t))}, {vr(PR[l,0]+4)}, 0")
        mf.append(f"{MF} {vr(d)}, {vr(accN(t,2*l))}, {vr(PR[l,1])}, {vr(d)}")
        mf.append(f"{MF} {vr(d+4)}, {vr(accN(t,2*l))}, {vr(PR[l,1]+4)}, {vr(d+4)}")
    NM = len(mf)
    barpos = {0: -1}
    ntile = lambda i: 8 if i < 14 else 7
    for i in range(29):
        barpos[i+1] = stepstart[i] + 4*(ntile(i)-PD) - 1
    chain = []
    def bar(label, pre=None):
        def f():
            if pre: pre()
            s("s_barrier")
            if stamps and label in stamps: s(f"s_memrealtime s[{70+2*stamps[label]}:{71+2*stamps[label]}]")
        return f
    events = []
    for k in range(30):
        pre = (lambda: s("s_waitcnt lgkmcnt(0)")) if (D == 4 and k > 0) else None
        if k == 6: pre = lambda: s(f"s_waitcnt lgkmcnt(0)\ns_add_u32 s{sNONCE}, s{sNONCE}, 0x9E3779B9")
        events.append((barpos[k], 0, barpos[k]+1, bar(f"B{k}", pre), 1))
    for gi, (i, T, m0) in enumerate(tiles):
        ab = AB + 4*(gi % 4)
        pos = tiles[gi-PD][2] if gi >= PD else -1
        if i == 14 and T < PD: pos = max(pos, stepstart[13] + 4*(8-PD) + 4*T)
        slot = LW + (i % 4)*16384
        if i >= 14 and i % 8 == 6 and i == 14:
            events.append((pos, 1, m0, f"v_xor_b32 v{aW+T}, s{sT5+T}, v{vB0}", 1))
        events.append((pos, 2, m0, f"ds_read_b64_tr_b16 {vr(ab,2)}, v{aW+T} offset:{slot}", 1))
        events.append((pos+1 if pos >= 0 else -1, 2, m0, f"ds_read_b64_tr_b16 {vr(ab+2,2)}, v{aW+T} offset:{slot+2048}", 1))
    for i in range(30):
        for q4 in range(4):
            pos = barpos[i] + (2, 3, 4, 5)[q4] if i > 0 else -1
            off = ((i//2) % 2)*16384 + (q4 % 2)*2048
            events.append((pos, 3, stepstart[i]+q4, f"ds_read_b128 {vr(BB+16*(i%2)+4*q4)}, v{aX+2*(q4//2)+(i%2)} offset:{off}", 1))
    events.sort(key=lambda e: (e[0], e[1]))
    items.append([(e[0], e[2], e[3], e[4]) for e in events])
    ch = []
    kb = barpos[P["kbar"]]
    for sx in range(4):
        for e in range(2):
            dl = S0 + 8*sx - 6
            ch.append((kb, dl, f"v_xor_b32 v0, {(4*sx+2*e) << 4}, v1", 1))
            for l in (1, 0):
                for kt in range(2):
                    r = kfr(l, kt, sx) + 2*e
                    rdy = kb
                    if kfr(l, kt, sx) == 4: rdy = max(kb, 0)
                    ch.append((rdy, dl, f"ds_read_b64 {vr(r,2)}, v0 offset:{l*16384 + kt*8192}", 1))
    items.append(ch)
    for sx in range(4):
        ch = []
        rdy = stepstart[13] + 8*sx + 7 + 2
        if sx == 3: rdy = S0 + 1
        for qt in (2, 3, 0, 1):
            a, b = acc1(2*sx, qt), acc1(2*sx+1, qt)
            dl = S0 + 8*sx + (0 if qt >= 2 else 4) - 1
            if sx <= 1: dl = min(dl, S0 - 1)
            ch += [(rdy, dl, f"v_cvt_pk_bf16_f32 v{a}, v{a}, v{a+1}", 1), (rdy, dl, f"v_cvt_pk_bf16_f32 v{a+1}, v{a+2}, v{a+3}", 1),
                   (rdy, dl, f"v_cvt_pk_bf16_f32 v{a+2}, v{b}, v{b+1}", 1), (rdy, dl, f"v_cvt_pk_bf16_f32 v{a+3}, v{b+2}, v{b+3}", 1)]
        items.append(ch)
    ch = []
    p14 = stepstart[14]
    R = F; T0 = F + 16
    ch.append((S0+26, p14, f"v_lshrrev_b32 v0, 4, v2", 1))
    ch.append((S0+26, p14, f"v_lshlrev_b32 v0, 9, v0", 1))
    ch.append((S0+26, p14, f"v_and_b32 v1, 15, v2", 1))
    ch.append((S0+26, p14, f"v_lshl_add_u32 v0, v1, 4, v0", 1))
    ch.append((S0+26, p14, f"s_lshl_b32 s22, s{sBP}, 15\ns_lshl_b32 s23, s{sDH}, 8\ns_add_u32 s22, s22, s23\ns_add_u32 s22, s22, {LK}", 4))
    ch.append((S0+26, p14, f"v_add_u32 v0, s22, v0", 1))
    for j in range(4):
        ch.append((S0+30, p14+2, (lambda j=j: s(f"ds_write_b128 v0, {vr(SS+4*j)} offset:{2048*j}", tag="SW")), 1))
    bs = p14 + 7
    def bS():
        s.wait_lds_tag("SW"); s("s_barrier")
        if stamps and "BS" in stamps: s(f"s_memrealtime s[{70+2*stamps['BS']}:{71+2*stamps['BS']}]")
    ch.append((p14+1, bs+1, f"v_xor_b32 v0, 0x100, v0", 1))
    ch.append((bs, bs+1, bS, 2))
    dl = stepstart[20]
    for j in range(4): ch.append((bs, dl, f"ds_read_b128 {vr(R+4*j)}, v0 offset:{2048*j}", 1))
    rd = bs + 8
    sm = []
    for j in range(16): sm.append(f"v_add_f32 v{SK+j}, v{SK+j}, v{R+j}")
    sv = lambda q2: [SK + 8*kt + 4*q2 + r for kt in range(2) for r in range(4)]
    M = [T0, T0+1]; Tm = [T0+2, T0+3]; SU = [T0+4, T0+5]; PF = T0 + 8
    def both(f):
        for q2 in range(2): sm.append(f(q2))
    both(lambda q: f"v_max3_f32 v{M[q]}, v{sv(q)[0]}, v{sv(q)[1]}, v{sv(q)[2]}")
    both(lambda q: f"v_max3_f32 v{M[q]}, v{M[q]}, v{sv(q)[3]}, v{sv(q)[4]}")
    both(lambda q: f"v_max3_f32 v{M[q]}, v{M[q]}, v{sv(q)[5]}, v{sv(q)[6]}")
    both(lambda q: f"v_max_f32 v{M[q]}, v{M[q]}, v{sv(q)[7]}")
    for pl in ("v_permlane32_swap_b32", "v_permlane16_swap_b32"):
        both(lambda q: f"v_mov_b32 v{Tm[q]}, v{M[q]}")
        both(lambda q: f"{pl} v{M[q]}, v{Tm[q]}")
        both(lambda q: f"v_max_f32 v{M[q]}, v{M[q]}, v{Tm[q]}")
    sm.append("s_mov_b32 s22, 0x3db8aa3b")
    both(lambda q: f"v_mul_f32 v{M[q]}, s22, v{M[q]}")
    for j in range(8):
        both(lambda q: f"v_fma_f32 v{sv(q)[j]}, v{sv(q)[j]}, s22, -v{M[q]}")
    for j in range(8):
        both(lambda q: f"v_exp_f32 v{sv(q)[j]}, v{sv(q)[j]}")
    both(lambda q: f"v_add_f32 v{SU[q]}, v{sv(q)[0]}, v{sv(q)[1]}")
    for j in range(2, 8):
        both(lambda q: f"v_add_f32 v{SU[q]}, v{SU[q]}, v{sv(q)[j]}")
    for pl in ("v_permlane32_swap_b32", "v_permlane16_swap_b32"):
        both(lambda q: f"v_mov_b32 v{Tm[q]}, v{SU[q]}")
        both(lambda q: f"{pl} v{SU[q]}, v{Tm[q]}")
        both(lambda q: f"v_add_f32 v{SU[q]}, v{SU[q]}, v{Tm[q]}")
    both(lambda q: f"v_rcp_f32 v{SU[q]}, v{SU[q]}")
    for j in range(8):
        both(lambda q: f"v_mul_f32 v{sv(q)[j]}, v{sv(q)[j]}, v{SU[q]}")
    for j in range(4):
        both(lambda q: f"v_cvt_pk_bf16_f32 v{PF+4*q+j}, v{sv(q)[2*j]}, v{sv(q)[2*j+1]}")
    sm.append(f"v_lshlrev_b32 v1, 4, v2")
    sm.append(f"v_add_u32 v0, s24, v1")
    for q in range(2):
        sm.append(f"ds_write_b128 v0, {vr(PF+4*q)} offset:{1024*q}")
        sm.append(f"buffer_store_dwordx4 {vr(PF+4*q)}, v1, s[{sWS}:{sWS+3}], s{sPB} offen offset:{1024*q} sc1")
    for x in sm: ch.append((rd, dl, x, 2 if x.startswith("v_exp") or x.startswith("v_rcp") else 1))
    fp = stepstart[21]
    ch.append((rd, dl, f"v_cmp_eq_u32 vcc, 0, v2", 1))
    ch.append((rd, dl, f"v_mov_b32 v4, 0x80000000", 1))
    ch.append((rd, dl, f"v_mov_b32 v5, 0", 1))
    ch.append((rd, dl, f"v_cndmask_b32 v4, v4, v5, vcc", 1))
    ch.append((rd, dl, f"v_mov_b32 v5, s{sNONCE}", 1))
    ch.append((fp-4, fp, f"s_waitcnt vmcnt(0)", 1))
    ch.append((fp-4, fp, f"buffer_store_dword v5, v4, s[{sWS}:{sWS+3}], s{sPF} offen sc1", 1))
    ch.append((fp-4, fp+28, f"v_add_u32 v6, s24, v1", 1))
    ch.append((fp-4, fp+28, f"v_xor_b32 v7, 0x800, v6", 1))
    items.append(ch)
    ch = []
    for t in range(7):
        rdy = stepstart[21] + 4*t + 3 + 3
        dl = stepstart[22] + 4*t
        for l in range(2):
            a, b, d = accN(t, 2*l), accN(t, 2*l+1), NA(l, t)
            ch += [(rdy, dl, f"v_cvt_pk_bf16_f32 v{d}, v{a}, v{a+1}", 1), (rdy, dl, f"v_cvt_pk_bf16_f32 v{d+1}, v{a+2}, v{a+3}", 1),
                   (rdy, dl, f"v_cvt_pk_bf16_f32 v{d+2}, v{b}, v{b+1}", 1), (rdy, dl, f"v_cvt_pk_bf16_f32 v{d+3}, v{b+2}, v{b+3}", 1)]
    items.append(ch)
    ch = []
    for l in range(2):
        for hd in range(2):
            for q in range(2):
                ch.append((stepstart[29]+1, E0-4, f"ds_read_b128 {vr(PR[l,hd]+4*q)}, v{6+l} offset:{hd*8192 + q*1024}", 1))
    items.append(ch)
    ch = []
    for gi, (l, t) in enumerate(groups):
        rdy = stepstart[29] + 4*t + 3 + 3
        a, b = accN(t, 2*l), accN(t, 2*l+1)
        dl = E0 + 4*gi + 1
        ch += [(rdy, dl, f"v_cvt_pk_bf16_f32 v{a}, v{a}, v{a+1}", 1), (rdy, dl, f"v_cvt_pk_bf16_f32 v{a+1}, v{a+2}, v{a+3}", 1),
               (rdy, dl, f"v_cvt_pk_bf16_f32 v{a+2}, v{b}, v{b+1}", 1), (rdy, dl, f"v_cvt_pk_bf16_f32 v{a+3}, v{b+2}, v{b+3}", 1)]
    items.append(ch)
    ch = []
    for gi, (l, t) in enumerate(groups):
        d = DB[gi % 2]
        rdy = min(E0 + 4*gi + 3 + 3, NM-1); dl = min(E0 + 4*(gi+2), NM)
        ch += [(rdy, dl, f"v_cvt_pk_bf16_f32 v{d}, v{d}, v{d+1}", 1), (rdy, dl, f"v_cvt_pk_bf16_f32 v{d+1}, v{d+2}, v{d+3}", 1),
               (rdy, dl, f"v_cvt_pk_bf16_f32 v{d+2}, v{d+4}, v{d+5}", 1), (rdy, dl, f"v_cvt_pk_bf16_f32 v{d+3}, v{d+6}, v{d+7}", 1)]
        so = (sO0, sO1)[l]
        pre = f"s_add_u32 s{so}, s{so}, 4096\n" if t == 4 else ""
        ch.append((rdy, dl, pre + f"buffer_store_dwordx4 {vr(d)}, v1, s[{sWS}:{sWS+3}], s{so} offen offset:{1024*(t%4)} sc1", 1))
    items.append(ch)
    firsts = set(m for (_, _, m) in tiles)
    sched(s, mf, items, lambda p: P["budget"] - (1 if (p+1) in firsts else 0))
    if stamps and "E" in stamps: s(f"s_memrealtime s[{70+2*stamps['E']}:{71+2*stamps['E']}]")
    s("s_waitcnt vmcnt(7)")
    s(f"buffer_store_dword v5, v4, s[{sWS}:{sWS+3}], s{sF0} offen sc1")
    s("s_waitcnt vmcnt(1)")
    s(f"buffer_store_dword v5, v4, s[{sWS}:{sWS+3}], s{sF1} offen sc1")
    if stamps:
        if "F" in stamps: s(f"s_memrealtime s[{70+2*stamps['F']}:{71+2*stamps['F']}]")
        put_stamps(s, 8, 8)
    s("s_endpgm")
    out.append(s.text())
    info = dict(compute_instrs=len(s.ins), nops=s.nnop, waits=s.nwait, mfma=NM)

    L = Stream()
    L("L_loader:")
    sLW = 69
    L(f"s_sub_u32 s{sLW}, s{sWAVE}, 4")
    vWq, vWo, vXx, vXv, vKk = 8, 12, 16, 20, 24
    L(f"v_lshrrev_b32 v3, 5, v2\nv_and_b32 v4, 31, v2\ns_and_b32 s3, s{sLW}, 1\ns_lshl_b32 s3, s3, 3\ns_lshl_b32 s38, s{sLW}, 3")
    for p in range(4):
        L(f"v_add_u32 v5, {(2*p)&3}, v3\nv_lshlrev_b32 v5, 1, v5\nv_or_b32 v5, s3, v5\nv_xor_b32 v5, v5, v4\nv_lshlrev_b32 v5, 4, v5")
        L(f"v_add_u32 v6, {2*p}, v3\nv_add_u32 v6, s38, v6\nv_lshl_add_u32 v{vWq+p}, v6, 13, v5\nv_mul_u32_u24 v6, 896, v6\nv_add_u32 v{vWo+p}, v6, v5")
        if p: L(f"v_subrev_u32 v{vWq+p}, {1024*p}, v{vWq+p}\nv_subrev_u32 v{vWo+p}, {1024*p}, v{vWo+p}")
    L(f"v_lshrrev_b32 v3, 3, v2\nv_and_b32 v4, 7, v2\nv_lshrrev_b32 v7, 4, v2\nv_xor_b32 v4, v4, v7\ns_lshl_b32 s38, s{sLW}, 5")
    for p in range(4):
        L(f"v_xor_b32 v5, {(p&1)<<2}, v4\nv_lshlrev_b32 v5, 4, v5\nv_add_u32 v6, {8*p}, v3\nv_lshl_add_u32 v{vXv+p}, v6, 9, v5")
        L(f"v_add_u32 v6, s38, v6\nv_mul_u32_u24 v6, 896, v6\nv_add_u32 v{vXx+p}, v6, v5")
        if p: L(f"v_subrev_u32 v{vXv+p}, {1024*p}, v{vXv+p}\nv_subrev_u32 v{vXx+p}, {1024*p}, v{vXx+p}")
    L("s_waitcnt lgkmcnt(0)")
    L(f"s_cmp_eq_u32 s{sBR}, 0")
    for (dst, i, size) in ((sX,0,917504),(sK,1,None),(sV,2,None),(sW,3,3670016),(sO,4,3670016)):
        L(f"s_cselect_b32 s{dst}, s{4+2*i}, s{14+2*i}\ns_cselect_b32 s{dst+1}, s{5+2*i}, s{15+2*i}")
    for dst, size in ((sW,3670016),(sX,917504)):
        L(f"s_and_b32 s{dst+1}, s{dst+1}, 0xffff\ns_mov_b32 s{dst+2}, {size}\ns_mov_b32 s{dst+3}, 0x20000")
    sJ1, sWo_, sXo_, sKo, sVo, sOo, sM0W, sM0X = 80, 81, 82, 83, 84, 85, 86, 87
    L(f"s_lshl_b32 s{sM0W}, s{sLW}, 12\ns_add_u32 s{sM0X}, s{sM0W}, {LX}")
    if P["rot1"]:
        L(f"s_lshl_b32 s3, s{sHH}, 1\ns_add_u32 s{sJ1}, s3, s{sBG}\ns_cmp_ge_u32 s{sJ1}, 7\ns_cselect_b32 s3, 7, 0\ns_sub_u32 s{sJ1}, s{sJ1}, s3\ns_cmp_ge_u32 s{sJ1}, 7\ns_cselect_b32 s3, 7, 0\ns_sub_u32 s{sJ1}, s{sJ1}, s3")
    else: L(f"s_mov_b32 s{sJ1}, 0")
    sJW, sJX, sWb, sXb = 88, 89, 90, 91
    L(f"s_mov_b32 s{sJW}, s{sJ1}\ns_mov_b32 s{sJX}, s{sJ1}\ns_lshl_b32 s{sWb}, s{sH}, 9\ns_mul_i32 s{sXb}, s{sBG}, {128*896}")
    issuedW = []; issuedX = []
    def dma4(vbase, srd, soff, m0expr, pol, tag):
        L(m0expr)
        for p in range(4):
            L(f"buffer_load_dwordx4 v{vbase+p}, s[{srd}:{srd+3}], s{soff} offen offset:{1024*p} {pol} lds".replace("  ", " "), tag=tag)
    def issueW(i):
        m0 = f"s_add_u32 m0, s{sM0W}, {LW + (i%4)*16384}"
        if i < 14:
            if i % 2 == 0:
                L(f"s_lshl_b32 s{sWo_}, s{sJW}, 19\ns_add_u32 s{sWo_}, s{sWo_}, s{sWb}\ns_add_u32 s{sJW}, s{sJW}, 1\ns_cmp_eq_u32 s{sJW}, 7\ns_cselect_b32 s{sJW}, 0, s{sJW}")
            else: L(f"s_add_u32 s{sWo_}, s{sWo_}, {32*8192}")
            dma4(vWq, sW, sWo_, m0, P["pW"], f"W{i}")
        else:
            k = i - 14
            if k % 8 == 0:
                hx = f"s{sH}" if k == 0 else "s3"
                if k: L(f"s_xor_b32 s3, s{sH}, 1")
                L(f"s_mul_i32 s{sWb}, {hx}, {256*896}\ns_and_b32 s3, s{sHH}, 1\ns_mul_i32 s3, s3, 384\ns_add_u32 s{sWb}, s{sWb}, s3")
                if P["rot2"]: L(f"s_and_b32 s{sJW}, s{sBG}, 3")
                else: L(f"s_mov_b32 s{sJW}, 0")
            if k % 2 == 0:
                L(f"s_mul_i32 s{sWo_}, s{sJW}, {64*896}\ns_add_u32 s{sWo_}, s{sWo_}, s{sWb}\ns_add_u32 s{sJW}, s{sJW}, 1\ns_and_b32 s{sJW}, s{sJW}, 3")
            else: L(f"s_add_u32 s{sWo_}, s{sWo_}, {32*896}")
            dma4(vWo, sO, sWo_, m0, P["pO"], f"W{i}")
    def issueX(j):
        m0 = f"s_add_u32 m0, s{sM0X}, {(j%2)*16384}"
        if j < 7:
            L(f"s_lshl_b32 s{sXo_}, s{sJX}, 7\ns_add_u32 s{sXo_}, s{sXo_}, s{sXb}\ns_add_u32 s{sJX}, s{sJX}, 1\ns_cmp_eq_u32 s{sJX}, 7\ns_cselect_b32 s{sJX}, 0, s{sJX}")
            dma4(vXx, sX, sXo_, m0, P["pX"], f"X{j}")
        else:
            k = j - 7
            if k % 4 == 0:
                if k: L(f"s_xor_b32 s3, s{sH}, 1")
                else: L(f"s_mov_b32 s3, s{sH}")
                L(f"s_lshr_b32 s3, s3, s{sKVS}\ns_lshl_b32 s3, s3, 14\ns_lshl_b32 s{sXb}, s{sBG}, 2\ns_add_u32 s{sXb}, s{sXb}, s{sLW}\ns_mul_i32 s{sXb}, s{sXb}, s{sBST}\ns_add_u32 s{sXb}, s{sXb}, s3")
                if P["rot2"]: L(f"s_and_b32 s{sJX}, s{sBG}, 3")
                else: L(f"s_mov_b32 s{sJX}, 0")
            L(f"s_lshl_b32 s{sXo_}, s{sJX}, 7\ns_add_u32 s{sXo_}, s{sXo_}, s{sXb}\ns_add_u32 s{sJX}, s{sJX}, 1\ns_and_b32 s{sJX}, s{sJX}, 3")
            dma4(vXv, sV, sXo_, m0, P["pV"], f"X{j}")
    issueW(0); issueX(0); issueW(1); issueW(2); issueX(1); issueW(3)
    L(f"s_lshl_b32 s3, 0x400000, s{sBR}")
    for dst in (sK, sV): L(f"s_and_b32 s{dst+1}, s{dst+1}, 0xffff\ns_mov_b32 s{dst+2}, s3\ns_mov_b32 s{dst+3}, 0x20000")
    L(f"s_and_b32 s{sO+1}, s{sO+1}, 0xffff\ns_mov_b32 s{sO+2}, 3670016\ns_mov_b32 s{sO+3}, 0x20000")
    L(f"s_mov_b32 s{sOUT}, s24\ns_and_b32 s{sOUT+1}, s25, 0xffff\ns_mov_b32 s{sOUT+2}, {32*32*896*2}\ns_mov_b32 s{sOUT+3}, 0x20000")
    ws_srd(L); load_nonce(L)
    if P["prefetch_code"]:
        L(f"s_cmp_lg_u32 s{sLW}, 0\ns_cbranch_scc1 L_nopf\ns_getpc_b64 s[92:93]\nL_pc:\ns_sub_u32 s92, s92, L_pc-{NAME}\ns_subb_u32 s93, s93, 0")
        L(f"s_bfe_u32 s3, s2, 0x20003\ns_lshl_b32 s3, s3, 13\nv_lshl_add_u32 v5, v2, 7, s3\nv_min_u32 v5, L_end-{NAME}, v5\nglobal_load_dword v40, v5, s[92:93]", tag="PF")
        L.raw("L_nopf:")
        L.vm.pop()
    L(f"v_lshrrev_b32 v3, 5, v2\nv_and_b32 v4, 31, v2\nv_bfe_u32 v7, v2, 4, 1\nv_xor_b32 v7, s{sLW}, v7\nv_mul_lo_u32 v7, v7, s{sBST}")
    for p in range(8):
        L(f"v_add_u32 v6, {2*p}, v3\nv_xor_b32 v5, v6, v4\nv_lshlrev_b32 v5, 4, v5\nv_lshl_add_u32 v5, v6, 9, v5\nv_add_u32 v{vKk+p}, v5, v7")
        if p % 4: L(f"v_subrev_u32 v{vKk+p}, {1024*(p%4)}, v{vKk+p}")
    L(f"s_lshr_b32 s3, s{sH}, s{sKVS}\ns_lshl_b32 s3, s3, 14\ns_lshl_b32 s{sKo}, s{sBG}, 2\ns_mul_i32 s{sKo}, s{sKo}, s{sBST}\ns_add_u32 s{sKo}, s{sKo}, s3\ns_add_u32 s{sVo}, s{sKo}, 8192")
    L(f"s_lshl_b32 s{sOo}, s{sLW}, 14\ns_add_u32 s{sOo}, s{sOo}, {LK}")
    def issueK(g):
        dma4(vKk + 4*(g%2), sK, sKo if g < 2 else sVo, f"s_add_u32 m0, s{sOo}, {4096*g}", P["pK"], "K")
    sG2, sM2 = 94, 95
    group_regs(L, sG2, sM2)
    L(f"v_lshlrev_b32 v1, 4, v2")
    ks = {int(k): v for k, v in P["ksched"].items()}
    for g in ks.get(-1, []): issueK(g)
    for k in range(30):
        tags = {f"W{k}", f"X{k//2}"}
        if k == P["kbar"]: tags.add("K")
        if k == 29: tags.add("P")
        L.wait_vm_tags(tags)
        L("s_barrier")
        if stamps and f"B{k}" in stamps: L(f"s_memrealtime s[{70+2*stamps[f'B{k}']}:{71+2*stamps[f'B{k}']}]")
        nw = k + D - 1
        if 4 <= nw < 30: issueW(nw)
        if k >= 2 and k % 2 == 0 and k//2 + 1 < 15: issueX(k//2 + 1)
        for g in ks.get(k, []): issueK(g)
        if k == 6: L(f"s_waitcnt lgkmcnt(0)\ns_add_u32 s{sNONCE}, s{sNONCE}, 0x9E3779B9")
        if k == 14: L("s_barrier")
        if k == 24:
            L(f"s_xor_b32 s3, s2, 8\ns_lshl_b32 s96, s3, 7\ns_lshl_b32 s97, s{sLW}, 2\ns_add_u32 s96, s96, s97\ns_add_u32 s96, s96, {PFLAG}\nv_mov_b32 v41, 0")
            L(f"s_lshl_b32 s97, s3, 13\ns_lshl_b32 s3, s{sLW}, 11\ns_add_u32 s97, s97, s3\ns_add_u32 s97, s97, {PBUF}")
            L(f"buffer_load_dword v42, v41, s[{sWS}:{sWS+3}], s96 offen sc1", tag="PP")
        if k == 26:
            L(f"v_cmp_ne_u32 vcc, s{sNONCE}, v42\ns_cbranch_vccz L_pok\ns_mov_b32 s98, 0")
            L.raw(f"L_pspin:\ns_sleep 2\nbuffer_load_dword v42, v41, s[{sWS}:{sWS+3}], s96 offen sc1\ns_add_u32 s98, s98, 1\ns_cmp_gt_u32 s98, {SPIN}\ns_cbranch_scc1 L_pok\ns_waitcnt vmcnt(0)\nv_cmp_ne_u32 vcc, s{sNONCE}, v42\ns_cbranch_vccnz L_pspin\nL_pok:")
            L(f"s_lshl_b32 s3, s{sLW}, 11\ns_add_u32 m0, s3, {LP + 8192}")
            L(f"buffer_load_dwordx4 v1, s[{sWS}:{sWS+3}], s97 offen sc1 lds", tag="P")
            L(f"buffer_load_dwordx4 v1, s[{sWS}:{sWS+3}], s97 offen offset:1024 sc1 lds", tag="P")
    L(f"s_lshl_b32 s3, s{sG2}, 3\ns_add_u32 s3, s3, s{sM2}\ns_lshl_b32 s96, s3, 7\ns_add_u32 s96, s96, {RFLAG}\ns_mul_i32 s97, s3, 57344\ns_add_u32 s97, s97, {MBOX}")
    L(f"s_lshl_b32 s3, s{sLW}, 10\ns_add_u32 s97, s97, s3\nv_and_b32 v41, 7, v2\nv_lshlrev_b32 v41, 2, v41")
    L(f"s_lshr_b32 s3, s{sM2}, 1\ns_lshl_b32 s92, s{sBG}, 2\ns_add_u32 s3, s3, s92\ns_mul_i32 s92, s3, {32*1792}\ns_mul_i32 s3, s{sBR}, 896\ns_add_u32 s92, s92, s3")
    L(f"s_and_b32 s3, s{sHH}, 1\ns_mul_i32 s3, s3, 448\ns_add_u32 s92, s92, s3\ns_and_b32 s3, s{sM2}, 1\ns_mul_i32 s3, s3, 224\ns_add_u32 s92, s92, s3\ns_lshl_b32 s3, s{sLW}, 5\ns_add_u32 s92, s92, s3")
    L(f"v_and_b32 v3, 15, v2\nv_mul_u32_u24 v3, 1792, v3\nv_lshrrev_b32 v4, 4, v2\nv_lshl_add_u32 v3, v4, 3, v3\ns_add_u32 s93, s92, {16*1792}")
    L("s_mov_b32 s98, 0")
    L.raw(f"L_rspin:\nbuffer_load_dword v42, v41, s[{sWS}:{sWS+3}], s96 offen sc1\ns_add_u32 s98, s98, 1\ns_cmp_gt_u32 s98, {SPIN}\ns_cbranch_scc1 L_rok\ns_waitcnt vmcnt(0)\nv_cmp_ne_u32 vcc, s{sNONCE}, v42\ns_cbranch_vccnz L_rspin\nL_rok:")
    L.vm = []
    if stamps and "E" in stamps: L(f"s_memrealtime s[{70+2*stamps['E']}:{71+2*stamps['E']}]")
    def loads(base):
        for src in range(8):
            L(f"buffer_load_dwordx4 {vr(base+4*src)}, v1, s[{sWS}:{sWS+3}], s99 offen sc1")
            if src < 7: L(f"s_add_u32 s99, s99, 7168")
    def reduce(base, acc, coff):
        t0, t1 = acc + 8, acc + 9
        for src in range(8):
            for j in range(4):
                r = base + 4*src + j
                if src == 0:
                    L(f"v_lshlrev_b32 v{acc+2*j}, 16, v{r}\nv_and_b32 v{acc+2*j+1}, 0xffff0000, v{r}")
                else:
                    L(f"v_lshlrev_b32 v{t0}, 16, v{r}\nv_and_b32 v{t1}, 0xffff0000, v{r}\nv_add_f32 v{acc+2*j}, v{acc+2*j}, v{t0}\nv_add_f32 v{acc+2*j+1}, v{acc+2*j+1}, v{t1}")
        for j in range(4): L(f"v_cvt_pk_bf16_f32 v{acc+j}, v{acc+2*j}, v{acc+2*j+1}")
        L(f"buffer_store_dwordx2 {vr(acc,2)}, v3, s[{sOUT}:{sOUT+3}], s92 offen offset:{coff}")
        L(f"buffer_store_dwordx2 {vr(acc+2,2)}, v3, s[{sOUT}:{sOUT+3}], s93 offen offset:{coff}")
    L("s_mov_b32 s99, s97"); loads(44)
    L(f"s_cmp_eq_u32 s{sLW}, 3\ns_cbranch_scc1 L_one")
    L("s_add_u32 s99, s97, 4096"); loads(76)
    reduce(44, 108, 0); reduce(76, 120, 128)
    L("s_branch L_fin")
    L.raw("L_one:")
    L.vm = [(None, set(range(44+4*k, 48+4*k))) for k in range(8)]
    reduce(44, 108, 0)
    L(f"s_cmp_lg_u32 s{sH}, 0\ns_cbranch_scc1 L_fin")
    L(f"v_cmp_eq_u32 vcc, 0, v2\nv_mov_b32 v4, 0x80000000\nv_mov_b32 v5, 0\nv_cndmask_b32 v4, v4, v5, vcc\nv_mov_b32 v5, s{sNONCE}")
    L(f"s_lshl_b32 s3, s{sBR}, 3\ns_add_u32 s3, s3, s{sBG}\ns_lshl_b32 s3, s3, 7\nbuffer_store_dword v5, v4, s[{sWS}:{sWS+3}], s3 offen sc1")
    L.raw("L_fin:")
    if stamps:
        if "F" in stamps: L(f"s_waitcnt vmcnt(0)\ns_memrealtime s[{70+2*stamps['F']}:{71+2*stamps['F']}]")
        put_stamps(L, 8, 8)
    L.raw("L_end:\ns_endpgm")
    out.append(L.text())
    info["loader_instrs"] = len(L.ins)
    body = "\n".join(out)
    txt = f"""{HEADER}; @launch grid=(256,1,1) block=(512,1,1) lds=163840
; generated by my own generator script (gen/gen.py); params: {json.dumps({k: P[k] for k in P if k != 'stamps'})}
.amdgcn_target "amdgcn-amd-amdhsa--gfx950"
.text
.globl {NAME}
.p2align 8
.type {NAME},@function
{NAME}:
{body}
.section .rodata,"a"
.p2align 6
.amdhsa_kernel {NAME}
  .amdhsa_next_free_vgpr 256
  .amdhsa_next_free_sgpr 102
  .amdhsa_accum_offset 256
  .amdhsa_group_segment_fixed_size 0
  .amdhsa_kernarg_size 104
  .amdhsa_user_sgpr_count 2
  .amdhsa_user_sgpr_kernarg_segment_ptr 1
  .amdhsa_system_sgpr_workgroup_id_x 1
.end_amdhsa_kernel
"""
    return txt, info

if __name__ == "__main__":
    kw = json.loads(sys.argv[2]) if len(sys.argv) > 2 else {}
    txt, info = gen(**kw)
    open(sys.argv[1], "w").write(txt)
    print(info, len(txt))
```

```python
import sys, json
from isa import Stream, I
NAME = "concat_heads__gqa_block_cached__mha_block_cached__near_ridge_kernel"
HEADER = open("concat_heads__gqa_block_cached__mha_block_cached__near_ridge.s.ref").read().split("; @launch")[0]

DEF = dict(D=3, PD=2, rot1=0, rot2=0, pW="", pX="", pK="nt", pV="", pO="", ksched={3:[0,1],6:[2,3]}, kbar=13,
           wsoff=0, stamps=0, prefetch_code=0, prio=0, xmap=0, budget=2, padto=0)

LW, LX, LK = 0, 65536, 98304
LP = LK + 16384
EPOCH, PFLAG, RFLAG, STAMP, PBUF, MBOX, WSSZ = 0, 0x1000, 0x10000, 0x20000, 0x100000, 0x400000, 0x1400000
SPIN = 200000
sWAVE, sBR, sHG, sBG, sHH, sH, sBST, sKVS = 30, 31, 32, 33, 34, 35, 36, 37
sW, sX, sK, sV, sO, sWS, sOUT = 40, 44, 48, 52, 56, 60, 64
sNONCE = 68
MF = "v_mfma_f32_16x16x32_bf16"
def vr(a, n=4): return f"v[{a}:{a+n-1}]"

def sched(st, mf, items, budget):
    heads = [0]*len(items)
    n = len(mf)
    def emit(x):
        if callable(x): x()
        else: st(x)
    for p in range(-1, n):
        if p >= 0: st(mf[p])
        room = budget(p) if p >= 0 else 10**9
        while True:
            best = None
            for ci, ch in enumerate(items):
                if heads[ci] < len(ch):
                    r, d, x, c = ch[heads[ci]]
                    dd = min(e[1] for e in ch[heads[ci]:])
                    if r <= p and (best is None or dd < best[0]): best = (dd, ci)
            if best is None: break
            dd, ci = best
            r, d, x, c = items[ci][heads[ci]]
            if p == -1 and dd > 0 and r > -1: break
            if room < c and dd > p+1 and p < n-1: break
            if p == -1 and dd > 8: break
            emit(x); room -= c; heads[ci] += 1
    for ci, ch in enumerate(items):
        assert heads[ci] == len(ch), ("unscheduled", ch[heads[ci]])

def gen(**kw):
    P = dict(DEF); P.update(kw)
    D, PD = P["D"], P["PD"]
    stamps = P["stamps"]
    out = []
    c = Stream()
    c("s_cmp_ge_u32 s2, 256\ns_cbranch_scc1 L_end")
    if stamps or P["padto"]: c("s_memrealtime s[70:71]")
    c("s_load_dwordx16 s[4:19], s[0:1], 0\ns_load_dwordx8 s[20:27], s[0:1], 64\ns_load_dwordx2 s[28:29], s[0:1], 96")
    c(f"v_lshrrev_b32 v1, 6, v0\nv_and_b32 v2, 63, v0\nv_readfirstlane_b32 s{sWAVE}, v1")
    if P["xmap"] == 0:
        c(f"s_and_b32 s{sBR}, s2, 1\ns_bfe_u32 s{sHG}, s2, 0x20001")
    else:
        c(f"s_bfe_u32 s{sBR}, s2, 0x10002\ns_and_b32 s{sHG}, s2, 3")
    c(f"s_lshr_b32 s{sBG}, s2, 5\ns_bfe_u32 s{sHH}, s2, 0x20003\ns_lshl_b32 s{sH}, s{sHG}, 2\ns_add_u32 s{sH}, s{sH}, s{sHH}")
    c(f"s_lshl_b32 s{sBST}, 0x20000, s{sBR}\ns_sub_u32 s{sKVS}, 1, s{sBR}")
    c(f"s_cmp_ge_u32 s{sWAVE}, 4\ns_cbranch_scc1 L_loader")
    out.append(c.text())

    def ws_srd(s):
        s(f"s_add_u32 s{sWS}, s28, {P['wsoff']}\ns_addc_u32 s{sWS+1}, s29, 0\ns_and_b32 s{sWS+1}, s{sWS+1}, 0xffff\ns_mov_b32 s{sWS+2}, {WSSZ}\ns_mov_b32 s{sWS+3}, 0x20000")
    def load_nonce(s):
        s(f"s_lshl_b32 s3, s{sBR}, 3\ns_add_u32 s3, s3, s{sBG}\ns_lshl_b32 s3, s3, 7\ns_add_u32 s38, s{sWS}, s3\ns_addc_u32 s39, s{sWS+1}, 0")
        if P['wsoff']: pass
        s(f"s_load_dword s{sNONCE}, s[38:39], {EPOCH}")
    def group_regs(s, sg, sm):
        s(f"s_lshl_b32 s{sg}, s{sBR}, 3\ns_add_u32 s{sg}, s{sg}, s{sBG}\ns_lshl_b32 s{sg}, s{sg}, 1\ns_and_b32 s3, s{sHH}, 1\ns_add_u32 s{sg}, s{sg}, s3")
        s(f"s_lshl_b32 s{sm}, s{sHG}, 1\ns_lshr_b32 s3, s{sHH}, 1\ns_add_u32 s{sm}, s{sm}, s3")
    def put_stamps(s, n, tmp):
        s("s_waitcnt lgkmcnt(0)")
        s(f"s_lshl_b32 s3, s2, 3\ns_add_u32 s3, s3, s{sWAVE}\ns_lshl_b32 s3, s3, 6\ns_add_u32 s3, s3, {STAMP}")
        s(f"v_cmp_eq_u32 vcc, 0, v2\nv_mov_b32 v{tmp+4}, 0x80000000\nv_cndmask_b32 v{tmp+4}, v{tmp+4}, 0, vcc".replace(", 0, vcc", ", v%d, vcc" % (tmp+5)).replace(f"v_mov_b32 v{tmp+4}, 0x8", f"v_mov_b32 v{tmp+5}, 0\nv_mov_b32 v{tmp+4}, 0x8"))
        for j in range(0, n, 2):
            for q in range(4): s(f"v_mov_b32 v{tmp+q}, s{70+2*j+q}")
            s(f"buffer_store_dwordx4 {vr(tmp)}, v{tmp+4}, s[{sWS}:{sWS+3}], s3 offen offset:{8*j}")

    s = Stream()
    vB0 = 3; aW = 8; aX = 16; AB = 20; BB = 36; F = 68
    if P["prio"]: s(f"s_setprio {P['prio']}")
    sBP, sDH, sT5, sG, sM, sO0, sO1, sF0, sF1, sPB, sPF = 4, 5, 6, 14, 15, 16, 17, 18, 19, 20, 21
    s(f"v_lshrrev_b32 v4, 4, v2\nv_bfe_u32 v5, v2, 2, 2\nv_and_b32 v6, 3, v2\nv_and_b32 v7, 15, v2")
    s(f"v_lshl_add_u32 v{vB0}, v4, 3, v5\nv_lshlrev_b32 v{vB0}, 9, v{vB0}\nv_lshl_add_u32 v{vB0}, v6, 3, v{vB0}\nv_lshl_add_u32 v{vB0}, v5, 5, v{vB0}")
    s(f"v_and_b32 v0, 1, v4\nv_lshl_add_u32 v{vB0}, v0, 7, v{vB0}")
    s("s_waitcnt lgkmcnt(0)")
    ws_srd(s); load_nonce(s)
    s(f"s_and_b32 s{sBP}, s{sWAVE}, 1\ns_lshr_b32 s{sDH}, s{sWAVE}, 1")
    s(f"s_lshl_b32 s3, s{sDH}, 8")
    for T in range(8):
        s(f"s_add_u32 s22, s3, {T<<5}\nv_xor_b32 v{aW+T}, s22, v{vB0}")
    s(f"v_lshrrev_b32 v0, 1, v7\nv_xor_b32 v0, v0, v4\nv_lshlrev_b32 v0, 4, v0\nv_lshl_add_u32 v0, v7, 7, v0")
    s(f"s_lshl_b32 s22, s{sBP}, 13\ns_lshl_b32 s23, s{sDH}, 12\ns_add_u32 s22, s22, s23\ns_add_u32 s22, s22, {LX}")
    s(f"v_add_u32 v{aX}, s22, v0\nv_xor_b32 v{aX+1}, 64, v{aX}\nv_xor_b32 v{aX+2}, 0x1000, v{aX}\nv_xor_b32 v{aX+3}, 0x1000, v{aX+1}")
    s(f"v_lshrrev_b32 v0, 1, v4\nv_xor_b32 v0, v0, v7\nv_lshlrev_b32 v0, 4, v0\nv_lshl_add_u32 v0, v7, 9, v0\nv_and_b32 v1, 1, v4\nv_lshl_add_u32 v0, v1, 3, v0")
    s(f"s_lshl_b32 s22, s{sBP}, 15\ns_lshl_b32 s23, s{sDH}, 8\ns_add_u32 s22, s22, s23\ns_add_u32 s22, s22, {LK}\nv_add_u32 v1, s22, v0")
    s(f"s_and_b32 s23, s{sHH}, 1\ns_lshl_b32 s23, s23, 6\ns_mul_i32 s{sT5}, s{sDH}, {7<<5}\ns_add_u32 s{sT5}, s{sT5}, s23")
    for t in range(1, 7): s(f"s_add_u32 s{sT5+t}, s{sT5}, {t<<5}")
    group_regs(s, sG, sM)
    s(f"s_lshl_b32 s22, s{sBP}, 2\ns_mul_i32 s23, s{sDH}, 3\ns_add_u32 s22, s22, s23\ns_xor_b32 s23, s22, 2\ns_lshl_b32 s3, s{sG}, 3\ns_add_u32 s22, s22, s3\ns_add_u32 s23, s23, s3")
    s(f"s_mul_i32 s3, s{sM}, 7168\ns_add_u32 s3, s3, {MBOX}\ns_mul_i32 s{sO0}, s22, 57344\ns_add_u32 s{sO0}, s{sO0}, s3\ns_mul_i32 s{sO1}, s23, 57344\ns_add_u32 s{sO1}, s{sO1}, s3")
    s(f"s_lshl_b32 s3, s{sM}, 2\ns_add_u32 s3, s3, {RFLAG}\ns_lshl_b32 s{sF0}, s22, 7\ns_add_u32 s{sF0}, s{sF0}, s3\ns_lshl_b32 s{sF1}, s23, 7\ns_add_u32 s{sF1}, s{sF1}, s3")
    s(f"s_lshl_b32 s22, s{sBP}, 1\ns_add_u32 s22, s22, s{sDH}\ns_lshl_b32 s{sPB}, s2, 13\ns_lshl_b32 s23, s22, 11\ns_add_u32 s{sPB}, s{sPB}, s23\ns_add_u32 s{sPB}, s{sPB}, {PBUF}")
    s(f"s_lshl_b32 s{sPF}, s2, 7\ns_lshl_b32 s23, s22, 2\ns_add_u32 s{sPF}, s{sPF}, s23\ns_add_u32 s{sPF}, s{sPF}, {PFLAG}")
    s(f"s_lshl_b32 s24, s22, 11\ns_add_u32 s24, s24, {LP}")

    accT = {0:128, 1:240, 2:144, 3:160, 4:176, 5:192, 6:208, 7:224}
    def acc1(T, qt): return accT[T] + 4*qt
    def accN(t, k4): return 128 + 16*t + 4*k4
    mf = []; items = []
    stepstart = {}; tilepos = []
    tiles = []
    for i in range(14):
        stepstart[i] = len(mf)
        for T in range(8):
            tiles.append((i, T, len(mf)))
            ab = AB + 4*((len(tiles)-1) % 4)
            for qt in range(4):
                cc = "0" if i == 0 else vr(acc1(T,qt))
                mf.append(f"{MF} {vr(acc1(T,qt))}, {vr(ab)}, {vr(BB+16*(i%2)+4*qt)}, {cc}")
    S0 = len(mf)
    SK, SS = 240, 160
    def kfr(l, kt, sx):
        j = sx*4 + l*2 + kt
        return F + 4*j if j < 15 else 4
    for sx in range(4):
        for l in (1, 0):
            for kt in range(2):
                for q2 in range(2):
                    d = (SK, SS)[l] + 8*kt + 4*q2
                    mf.append(f"{MF} {vr(d)}, {vr(kfr(l,kt,sx))}, {vr(acc1(2*sx, 2*l+q2))}, {'0' if sx == 0 else vr(d)}")
    for i in range(14, 30):
        stepstart[i] = len(mf)
        for t in range(7):
            tiles.append((i, t, len(mf)))
            ab = AB + 4*((len(tiles)-1) % 4)
            for k4 in range(4):
                cc = "0" if i in (14, 22) else vr(accN(t,k4))
                mf.append(f"{MF} {vr(accN(t,k4))}, {vr(BB+16*(i%2)+4*k4)}, {vr(ab)}, {cc}")
    E0 = len(mf)
    PR = {(0,0): 240, (0,1): 248, (1,0): BB, (1,1): BB+8}
    NA = lambda l, t: F + 4*(l*7 + t)
    groups = [(l, t) for l in range(2) for t in range(7)]
    DB = [AB, AB+8]
    for gi, (l, t) in enumerate(groups):
        d = DB[gi % 2]
        mf.append(f"{MF} {vr(d)}, {vr(NA(l,t))}, {vr(PR[l,0])}, 0")
        mf.append(f"{MF} {vr(d+4)}, {vr(NA(l,t))}, {vr(PR[l,0]+4)}, 0")
        mf.append(f"{MF} {vr(d)}, {vr(accN(t,2*l))}, {vr(PR[l,1])}, {vr(d)}")
        mf.append(f"{MF} {vr(d+4)}, {vr(accN(t,2*l))}, {vr(PR[l,1]+4)}, {vr(d+4)}")
    NM = len(mf)
    barpos = {0: -1}
    ntile = lambda i: 8 if i < 14 else 7
    for i in range(29):
        barpos[i+1] = stepstart[i] + 4*(ntile(i)-PD) - 1
    chain = []
    def bar(label, pre=None):
        def f():
            if pre: pre()
            s("s_barrier")
            if stamps and label in stamps: s(f"s_memrealtime s[{70+2*stamps[label]}:{71+2*stamps[label]}]")
        return f
    events = []
    for k in range(30):
        pre = (lambda: s("s_waitcnt lgkmcnt(0)")) if (D == 4 and k > 0) else None
        if k == 6: pre = lambda: s(f"s_waitcnt lgkmcnt(0)\ns_add_u32 s{sNONCE}, s{sNONCE}, 0x9E3779B9")
        events.append((barpos[k], 0, barpos[k]+1, bar(f"B{k}", pre), 1))
    for gi, (i, T, m0) in enumerate(tiles):
        ab = AB + 4*(gi % 4)
        pos = tiles[gi-PD][2] if gi >= PD else -1
        if i == 14 and T < PD: pos = max(pos, stepstart[13] + 4*(8-PD) + 4*T)
        slot = LW + (i % 4)*16384
        if i >= 14 and i % 8 == 6 and i == 14:
            events.append((pos, 1, m0, f"v_xor_b32 v{aW+T}, s{sT5+T}, v{vB0}", 1))
        events.append((pos, 2, m0, f"ds_read_b64_tr_b16 {vr(ab,2)}, v{aW+T} offset:{slot}", 1))
        events.append((pos+1 if pos >= 0 else -1, 2, m0, f"ds_read_b64_tr_b16 {vr(ab+2,2)}, v{aW+T} offset:{slot+2048}", 1))
    for i in range(30):
        for q4 in range(4):
            pos = barpos[i] + (2, 3, 4, 5)[q4] if i > 0 else -1
            off = ((i//2) % 2)*16384 + (q4 % 2)*2048
            events.append((pos, 3, stepstart[i]+q4, f"ds_read_b128 {vr(BB+16*(i%2)+4*q4)}, v{aX+2*(q4//2)+(i%2)} offset:{off}", 1))
    events.sort(key=lambda e: (e[0], e[1]))
    items.append([(e[0], e[2], e[3], e[4]) for e in events])
    ch = []
    kb = barpos[P["kbar"]]
    for sx in range(4):
        for e in range(2):
            dl = S0 + 8*sx - 6
            ch.append((kb, dl, f"v_xor_b32 v0, {(4*sx+2*e) << 4}, v1", 1))
            for l in (1, 0):
                for kt in range(2):
                    r = kfr(l, kt, sx) + 2*e
                    rdy = kb
                    if kfr(l, kt, sx) == 4: rdy = max(kb, 0)
                    ch.append((rdy, dl, f"ds_read_b64 {vr(r,2)}, v0 offset:{l*16384 + kt*8192}", 1))
    items.append(ch)
    for sx in range(4):
        ch = []
        rdy = stepstart[13] + 8*sx + 7 + 2
        if sx == 3: rdy = S0 + 1
        for qt in (2, 3, 0, 1):
            a, b = acc1(2*sx, qt), acc1(2*sx+1, qt)
            dl = S0 + 8*sx + (0 if qt >= 2 else 4) - 1
            if sx <= 1: dl = min(dl, S0 - 1)
            ch += [(rdy, dl, f"v_cvt_pk_bf16_f32 v{a}, v{a}, v{a+1}", 1), (rdy, dl, f"v_cvt_pk_bf16_f32 v{a+1}, v{a+2}, v{a+3}", 1),
                   (rdy, dl, f"v_cvt_pk_bf16_f32 v{a+2}, v{b}, v{b+1}", 1), (rdy, dl, f"v_cvt_pk_bf16_f32 v{a+3}, v{b+2}, v{b+3}", 1)]
        items.append(ch)
    ch = []
    p14 = stepstart[14]
    R = F; T0 = F + 16
    ch.append((S0+26, p14, f"v_lshrrev_b32 v0, 4, v2", 1))
    ch.append((S0+26, p14, f"v_lshlrev_b32 v0, 9, v0", 1))
    ch.append((S0+26, p14, f"v_and_b32 v1, 15, v2", 1))
    ch.append((S0+26, p14, f"v_lshl_add_u32 v0, v1, 4, v0", 1))
    ch.append((S0+26, p14, f"s_lshl_b32 s22, s{sBP}, 15\ns_lshl_b32 s23, s{sDH}, 8\ns_add_u32 s22, s22, s23\ns_add_u32 s22, s22, {LK}", 4))
    ch.append((S0+26, p14, f"v_add_u32 v0, s22, v0", 1))
    for j in range(4):
        ch.append((S0+30, p14+2, (lambda j=j: s(f"ds_write_b128 v0, {vr(SS+4*j)} offset:{2048*j}", tag="SW")), 1))
    bs = p14 + 7
    def bS():
        s.wait_lds_tag("SW"); s("s_barrier")
        if stamps and "BS" in stamps: s(f"s_memrealtime s[{70+2*stamps['BS']}:{71+2*stamps['BS']}]")
    ch.append((p14+1, bs+1, f"v_xor_b32 v0, 0x100, v0", 1))
    ch.append((bs, bs+1, bS, 2))
    dl = stepstart[20]
    for j in range(4): ch.append((bs, dl, f"ds_read_b128 {vr(R+4*j)}, v0 offset:{2048*j}", 1))
    rd = bs + 8
    sm = []
    for j in range(16): sm.append(f"v_add_f32 v{SK+j}, v{SK+j}, v{R+j}")
    sv = lambda q2: [SK + 8*kt + 4*q2 + r for kt in range(2) for r in range(4)]
    M = [T0, T0+1]; Tm = [T0+2, T0+3]; SU = [T0+4, T0+5]; PF = T0 + 8
    def both(f):
        for q2 in range(2): sm.append(f(q2))
    both(lambda q: f"v_max3_f32 v{M[q]}, v{sv(q)[0]}, v{sv(q)[1]}, v{sv(q)[2]}")
    both(lambda q: f"v_max3_f32 v{M[q]}, v{M[q]}, v{sv(q)[3]}, v{sv(q)[4]}")
    both(lambda q: f"v_max3_f32 v{M[q]}, v{M[q]}, v{sv(q)[5]}, v{sv(q)[6]}")
    both(lambda q: f"v_max_f32 v{M[q]}, v{M[q]}, v{sv(q)[7]}")
    for pl in ("v_permlane32_swap_b32", "v_permlane16_swap_b32"):
        both(lambda q: f"v_mov_b32 v{Tm[q]}, v{M[q]}")
        both(lambda q: f"{pl} v{M[q]}, v{Tm[q]}")
        both(lambda q: f"v_max_f32 v{M[q]}, v{M[q]}, v{Tm[q]}")
    sm.append("s_mov_b32 s22, 0x3db8aa3b")
    both(lambda q: f"v_mul_f32 v{M[q]}, s22, v{M[q]}")
    for j in range(8):
        both(lambda q: f"v_fma_f32 v{sv(q)[j]}, v{sv(q)[j]}, s22, -v{M[q]}")
    for j in range(8):
        both(lambda q: f"v_exp_f32 v{sv(q)[j]}, v{sv(q)[j]}")
    both(lambda q: f"v_add_f32 v{SU[q]}, v{sv(q)[0]}, v{sv(q)[1]}")
    for j in range(2, 8):
        both(lambda q: f"v_add_f32 v{SU[q]}, v{SU[q]}, v{sv(q)[j]}")
    for pl in ("v_permlane32_swap_b32", "v_permlane16_swap_b32"):
        both(lambda q: f"v_mov_b32 v{Tm[q]}, v{SU[q]}")
        both(lambda q: f"{pl} v{SU[q]}, v{Tm[q]}")
        both(lambda q: f"v_add_f32 v{SU[q]}, v{SU[q]}, v{Tm[q]}")
    both(lambda q: f"v_rcp_f32 v{SU[q]}, v{SU[q]}")
    for j in range(8):
        both(lambda q: f"v_mul_f32 v{sv(q)[j]}, v{sv(q)[j]}, v{SU[q]}")
    for j in range(4):
        both(lambda q: f"v_cvt_pk_bf16_f32 v{PF+4*q+j}, v{sv(q)[2*j]}, v{sv(q)[2*j+1]}")
    sm.append(f"v_lshlrev_b32 v1, 4, v2")
    sm.append(f"v_add_u32 v0, s24, v1")
    for q in range(2):
        sm.append(f"ds_write_b128 v0, {vr(PF+4*q)} offset:{1024*q}")
        sm.append(f"buffer_store_dwordx4 {vr(PF+4*q)}, v1, s[{sWS}:{sWS+3}], s{sPB} offen offset:{1024*q} sc1")
    for x in sm: ch.append((rd, dl, x, 2 if x.startswith("v_exp") or x.startswith("v_rcp") else 1))
    fp = stepstart[21]
    ch.append((rd, dl, f"v_cmp_eq_u32 vcc, 0, v2", 1))
    ch.append((rd, dl, f"v_mov_b32 v4, 0x80000000", 1))
    ch.append((rd, dl, f"v_mov_b32 v5, 0", 1))
    ch.append((rd, dl, f"v_cndmask_b32 v4, v4, v5, vcc", 1))
    ch.append((rd, dl, f"v_mov_b32 v5, s{sNONCE}", 1))
    ch.append((fp-4, fp, f"s_waitcnt vmcnt(0)", 1))
    ch.append((fp-4, fp, f"buffer_store_dword v5, v4, s[{sWS}:{sWS+3}], s{sPF} offen sc1", 1))
    ch.append((fp-4, fp+28, f"v_add_u32 v6, s24, v1", 1))
    ch.append((fp-4, fp+28, f"v_xor_b32 v7, 0x800, v6", 1))
    items.append(ch)
    ch = []
    for t in range(7):
        rdy = stepstart[21] + 4*t + 3 + 3
        dl = stepstart[22] + 4*t
        for l in range(2):
            a, b, d = accN(t, 2*l), accN(t, 2*l+1), NA(l, t)
            ch += [(rdy, dl, f"v_cvt_pk_bf16_f32 v{d}, v{a}, v{a+1}", 1), (rdy, dl, f"v_cvt_pk_bf16_f32 v{d+1}, v{a+2}, v{a+3}", 1),
                   (rdy, dl, f"v_cvt_pk_bf16_f32 v{d+2}, v{b}, v{b+1}", 1), (rdy, dl, f"v_cvt_pk_bf16_f32 v{d+3}, v{b+2}, v{b+3}", 1)]
    items.append(ch)
    ch = []
    for l in range(2):
        for hd in range(2):
            for q in range(2):
                ch.append((stepstart[29]+1, E0-4, f"ds_read_b128 {vr(PR[l,hd]+4*q)}, v{6+l} offset:{hd*8192 + q*1024}", 1))
    items.append(ch)
    ch = []
    for gi, (l, t) in enumerate(groups):
        rdy = stepstart[29] + 4*t + 3 + 3
        a, b = accN(t, 2*l), accN(t, 2*l+1)
        dl = E0 + 4*gi + 1
        ch += [(rdy, dl, f"v_cvt_pk_bf16_f32 v{a}, v{a}, v{a+1}", 1), (rdy, dl, f"v_cvt_pk_bf16_f32 v{a+1}, v{a+2}, v{a+3}", 1),
               (rdy, dl, f"v_cvt_pk_bf16_f32 v{a+2}, v{b}, v{b+1}", 1), (rdy, dl, f"v_cvt_pk_bf16_f32 v{a+3}, v{b+2}, v{b+3}", 1)]
    items.append(ch)
    ch = []
    for gi, (l, t) in enumerate(groups):
        d = DB[gi % 2]
        rdy = min(E0 + 4*gi + 3 + 3, NM-1); dl = min(E0 + 4*(gi+2), NM)
        ch += [(rdy, dl, f"v_cvt_pk_bf16_f32 v{d}, v{d}, v{d+1}", 1), (rdy, dl, f"v_cvt_pk_bf16_f32 v{d+1}, v{d+2}, v{d+3}", 1),
               (rdy, dl, f"v_cvt_pk_bf16_f32 v{d+2}, v{d+4}, v{d+5}", 1), (rdy, dl, f"v_cvt_pk_bf16_f32 v{d+3}, v{d+6}, v{d+7}", 1)]
        so = (sO0, sO1)[l]
        pre = f"s_add_u32 s{so}, s{so}, 4096\n" if t == 4 else ""
        ch.append((rdy, dl, pre + f"buffer_store_dwordx4 {vr(d)}, v1, s[{sWS}:{sWS+3}], s{so} offen offset:{1024*(t%4)} sc1", 1))
    items.append(ch)
    firsts = set(m for (_, _, m) in tiles)
    sched(s, mf, items, lambda p: P["budget"] - (1 if (p+1) in firsts else 0))
    if stamps and "E" in stamps: s(f"s_memrealtime s[{70+2*stamps['E']}:{71+2*stamps['E']}]")
    s("s_waitcnt vmcnt(7)")
    s(f"buffer_store_dword v5, v4, s[{sWS}:{sWS+3}], s{sF0} offen sc1")
    s("s_waitcnt vmcnt(1)")
    s(f"buffer_store_dword v5, v4, s[{sWS}:{sWS+3}], s{sF1} offen sc1")
    if stamps:
        if "F" in stamps: s(f"s_memrealtime s[{70+2*stamps['F']}:{71+2*stamps['F']}]")
        put_stamps(s, 8, 8)
    s("s_endpgm")
    out.append(s.text())
    info = dict(compute_instrs=len(s.ins), nops=s.nnop, waits=s.nwait, mfma=NM)

    L = Stream()
    L("L_loader:")
    sLW = 69
    L(f"s_sub_u32 s{sLW}, s{sWAVE}, 4")
    vWq, vWo, vXx, vXv, vKk = 8, 12, 16, 20, 24
    L(f"v_lshrrev_b32 v3, 5, v2\nv_and_b32 v4, 31, v2\ns_and_b32 s3, s{sLW}, 1\ns_lshl_b32 s3, s3, 3\ns_lshl_b32 s38, s{sLW}, 3")
    for p in range(4):
        L(f"v_add_u32 v5, {(2*p)&3}, v3\nv_lshlrev_b32 v5, 1, v5\nv_or_b32 v5, s3, v5\nv_xor_b32 v5, v5, v4\nv_lshlrev_b32 v5, 4, v5")
        L(f"v_add_u32 v6, {2*p}, v3\nv_add_u32 v6, s38, v6\nv_lshl_add_u32 v{vWq+p}, v6, 13, v5\nv_mul_u32_u24 v6, 896, v6\nv_add_u32 v{vWo+p}, v6, v5")
        if p: L(f"v_subrev_u32 v{vWq+p}, {1024*p}, v{vWq+p}\nv_subrev_u32 v{vWo+p}, {1024*p}, v{vWo+p}")
    L(f"v_lshrrev_b32 v3, 3, v2\nv_and_b32 v4, 7, v2\nv_lshrrev_b32 v7, 4, v2\nv_xor_b32 v4, v4, v7\ns_lshl_b32 s38, s{sLW}, 5")
    for p in range(4):
        L(f"v_xor_b32 v5, {(p&1)<<2}, v4\nv_lshlrev_b32 v5, 4, v5\nv_add_u32 v6, {8*p}, v3\nv_lshl_add_u32 v{vXv+p}, v6, 9, v5")
        L(f"v_add_u32 v6, s38, v6\nv_mul_u32_u24 v6, 896, v6\nv_add_u32 v{vXx+p}, v6, v5")
        if p: L(f"v_subrev_u32 v{vXv+p}, {1024*p}, v{vXv+p}\nv_subrev_u32 v{vXx+p}, {1024*p}, v{vXx+p}")
    L("s_waitcnt lgkmcnt(0)")
    L(f"s_cmp_eq_u32 s{sBR}, 0")
    for (dst, i, size) in ((sX,0,917504),(sK,1,None),(sV,2,None),(sW,3,3670016),(sO,4,3670016)):
        L(f"s_cselect_b32 s{dst}, s{4+2*i}, s{14+2*i}\ns_cselect_b32 s{dst+1}, s{5+2*i}, s{15+2*i}")
    for dst, size in ((sW,3670016),(sX,917504)):
        L(f"s_and_b32 s{dst+1}, s{dst+1}, 0xffff\ns_mov_b32 s{dst+2}, {size}\ns_mov_b32 s{dst+3}, 0x20000")
    sJ1, sWo_, sXo_, sKo, sVo, sOo, sM0W, sM0X = 80, 81, 82, 83, 84, 85, 86, 87
    L(f"s_lshl_b32 s{sM0W}, s{sLW}, 12\ns_add_u32 s{sM0X}, s{sM0W}, {LX}")
    if P["rot1"]:
        L(f"s_lshl_b32 s3, s{sHH}, 1\ns_add_u32 s{sJ1}, s3, s{sBG}\ns_cmp_ge_u32 s{sJ1}, 7\ns_cselect_b32 s3, 7, 0\ns_sub_u32 s{sJ1}, s{sJ1}, s3\ns_cmp_ge_u32 s{sJ1}, 7\ns_cselect_b32 s3, 7, 0\ns_sub_u32 s{sJ1}, s{sJ1}, s3")
    else: L(f"s_mov_b32 s{sJ1}, 0")
    sJW, sJX, sWb, sXb = 88, 89, 90, 91
    L(f"s_mov_b32 s{sJW}, s{sJ1}\ns_mov_b32 s{sJX}, s{sJ1}\ns_lshl_b32 s{sWb}, s{sH}, 9\ns_mul_i32 s{sXb}, s{sBG}, {128*896}")
    issuedW = []; issuedX = []
    def dma4(vbase, srd, soff, m0expr, pol, tag):
        L(m0expr)
        for p in range(4):
            L(f"buffer_load_dwordx4 v{vbase+p}, s[{srd}:{srd+3}], s{soff} offen offset:{1024*p} {pol} lds".replace("  ", " "), tag=tag)
    def issueW(i):
        m0 = f"s_add_u32 m0, s{sM0W}, {LW + (i%4)*16384}"
        if i < 14:
            if i % 2 == 0:
                L(f"s_lshl_b32 s{sWo_}, s{sJW}, 19\ns_add_u32 s{sWo_}, s{sWo_}, s{sWb}\ns_add_u32 s{sJW}, s{sJW}, 1\ns_cmp_eq_u32 s{sJW}, 7\ns_cselect_b32 s{sJW}, 0, s{sJW}")
            else: L(f"s_add_u32 s{sWo_}, s{sWo_}, {32*8192}")
            dma4(vWq, sW, sWo_, m0, P["pW"], f"W{i}")
        else:
            k = i - 14
            if k % 8 == 0:
                hx = f"s{sH}" if k == 0 else "s3"
                if k: L(f"s_xor_b32 s3, s{sH}, 1")
                L(f"s_mul_i32 s{sWb}, {hx}, {256*896}\ns_and_b32 s3, s{sHH}, 1\ns_mul_i32 s3, s3, 384\ns_add_u32 s{sWb}, s{sWb}, s3")
                if P["rot2"]: L(f"s_and_b32 s{sJW}, s{sBG}, 3")
                else: L(f"s_mov_b32 s{sJW}, 0")
            if k % 2 == 0:
                L(f"s_mul_i32 s{sWo_}, s{sJW}, {64*896}\ns_add_u32 s{sWo_}, s{sWo_}, s{sWb}\ns_add_u32 s{sJW}, s{sJW}, 1\ns_and_b32 s{sJW}, s{sJW}, 3")
            else: L(f"s_add_u32 s{sWo_}, s{sWo_}, {32*896}")
            dma4(vWo, sO, sWo_, m0, P["pO"], f"W{i}")
    def issueX(j):
        m0 = f"s_add_u32 m0, s{sM0X}, {(j%2)*16384}"
        if j < 7:
            L(f"s_lshl_b32 s{sXo_}, s{sJX}, 7\ns_add_u32 s{sXo_}, s{sXo_}, s{sXb}\ns_add_u32 s{sJX}, s{sJX}, 1\ns_cmp_eq_u32 s{sJX}, 7\ns_cselect_b32 s{sJX}, 0, s{sJX}")
            dma4(vXx, sX, sXo_, m0, P["pX"], f"X{j}")
        else:
            k = j - 7
            if k % 4 == 0:
                if k: L(f"s_xor_b32 s3, s{sH}, 1")
                else: L(f"s_mov_b32 s3, s{sH}")
                L(f"s_lshr_b32 s3, s3, s{sKVS}\ns_lshl_b32 s3, s3, 14\ns_lshl_b32 s{sXb}, s{sBG}, 2\ns_add_u32 s{sXb}, s{sXb}, s{sLW}\ns_mul_i32 s{sXb}, s{sXb}, s{sBST}\ns_add_u32 s{sXb}, s{sXb}, s3")
                if P["rot2"]: L(f"s_and_b32 s{sJX}, s{sBG}, 3")
                else: L(f"s_mov_b32 s{sJX}, 0")
            L(f"s_lshl_b32 s{sXo_}, s{sJX}, 7\ns_add_u32 s{sXo_}, s{sXo_}, s{sXb}\ns_add_u32 s{sJX}, s{sJX}, 1\ns_and_b32 s{sJX}, s{sJX}, 3")
            dma4(vXv, sV, sXo_, m0, P["pV"], f"X{j}")
    issueW(0); issueX(0); issueW(1); issueW(2); issueX(1); issueW(3)
    L(f"s_lshl_b32 s3, 0x400000, s{sBR}")
    for dst in (sK, sV): L(f"s_and_b32 s{dst+1}, s{dst+1}, 0xffff\ns_mov_b32 s{dst+2}, s3\ns_mov_b32 s{dst+3}, 0x20000")
    L(f"s_and_b32 s{sO+1}, s{sO+1}, 0xffff\ns_mov_b32 s{sO+2}, 3670016\ns_mov_b32 s{sO+3}, 0x20000")
    L(f"s_mov_b32 s{sOUT}, s24\ns_and_b32 s{sOUT+1}, s25, 0xffff\ns_mov_b32 s{sOUT+2}, {32*32*896*2}\ns_mov_b32 s{sOUT+3}, 0x20000")
    ws_srd(L); load_nonce(L)
    if P["prefetch_code"]:
        L(f"s_cmp_lg_u32 s{sLW}, 0\ns_cbranch_scc1 L_nopf\ns_getpc_b64 s[92:93]\nL_pc:\ns_sub_u32 s92, s92, L_pc-{NAME}\ns_subb_u32 s93, s93, 0")
        L(f"s_bfe_u32 s3, s2, 0x20003\ns_lshl_b32 s3, s3, 13\nv_lshl_add_u32 v5, v2, 7, s3\nv_min_u32 v5, L_end-{NAME}, v5\nglobal_load_dword v40, v5, s[92:93]", tag="PF")
        L.raw("L_nopf:")
        L.vm.pop()
    L(f"v_lshrrev_b32 v3, 5, v2\nv_and_b32 v4, 31, v2\nv_bfe_u32 v7, v2, 4, 1\nv_xor_b32 v7, s{sLW}, v7\nv_mul_lo_u32 v7, v7, s{sBST}")
    for p in range(8):
        L(f"v_add_u32 v6, {2*p}, v3\nv_xor_b32 v5, v6, v4\nv_lshlrev_b32 v5, 4, v5\nv_lshl_add_u32 v5, v6, 9, v5\nv_add_u32 v{vKk+p}, v5, v7")
        if p % 4: L(f"v_subrev_u32 v{vKk+p}, {1024*(p%4)}, v{vKk+p}")
    L(f"s_lshr_b32 s3, s{sH}, s{sKVS}\ns_lshl_b32 s3, s3, 14\ns_lshl_b32 s{sKo}, s{sBG}, 2\ns_mul_i32 s{sKo}, s{sKo}, s{sBST}\ns_add_u32 s{sKo}, s{sKo}, s3\ns_add_u32 s{sVo}, s{sKo}, 8192")
    L(f"s_lshl_b32 s{sOo}, s{sLW}, 14\ns_add_u32 s{sOo}, s{sOo}, {LK}")
    def issueK(g):
        dma4(vKk + 4*(g%2), sK, sKo if g < 2 else sVo, f"s_add_u32 m0, s{sOo}, {4096*g}", P["pK"], "K")
    sG2, sM2 = 94, 95
    group_regs(L, sG2, sM2)
    L(f"v_lshlrev_b32 v1, 4, v2")
    ks = {int(k): v for k, v in P["ksched"].items()}
    for g in ks.get(-1, []): issueK(g)
    for k in range(30):
        tags = {f"W{k}", f"X{k//2}"}
        if k == P["kbar"]: tags.add("K")
        if k == 29: tags.add("P")
        L.wait_vm_tags(tags)
        L("s_barrier")
        if stamps and f"B{k}" in stamps: L(f"s_memrealtime s[{70+2*stamps[f'B{k}']}:{71+2*stamps[f'B{k}']}]")
        nw = k + D - 1
        if 4 <= nw < 30: issueW(nw)
        if k >= 2 and k % 2 == 0 and k//2 + 1 < 15: issueX(k//2 + 1)
        for g in ks.get(k, []): issueK(g)
        if k == 6: L(f"s_waitcnt lgkmcnt(0)\ns_add_u32 s{sNONCE}, s{sNONCE}, 0x9E3779B9")
        if k == 14: L("s_barrier")
        if k == 24:
            L(f"s_xor_b32 s3, s2, 8\ns_lshl_b32 s96, s3, 7\ns_lshl_b32 s97, s{sLW}, 2\ns_add_u32 s96, s96, s97\ns_add_u32 s96, s96, {PFLAG}\nv_mov_b32 v41, 0")
            L(f"s_lshl_b32 s97, s3, 13\ns_lshl_b32 s3, s{sLW}, 11\ns_add_u32 s97, s97, s3\ns_add_u32 s97, s97, {PBUF}")
            L(f"buffer_load_dword v42, v41, s[{sWS}:{sWS+3}], s96 offen sc1", tag="PP")
        if k == 26:
            L(f"v_cmp_ne_u32 vcc, s{sNONCE}, v42\ns_cbranch_vccz L_pok\ns_mov_b32 s98, 0")
            L.raw(f"L_pspin:\ns_sleep 2\nbuffer_load_dword v42, v41, s[{sWS}:{sWS+3}], s96 offen sc1\ns_add_u32 s98, s98, 1\ns_cmp_gt_u32 s98, {SPIN}\ns_cbranch_scc1 L_pok\ns_waitcnt vmcnt(0)\nv_cmp_ne_u32 vcc, s{sNONCE}, v42\ns_cbranch_vccnz L_pspin\nL_pok:")
            L(f"s_lshl_b32 s3, s{sLW}, 11\ns_add_u32 m0, s3, {LP + 8192}")
            L(f"buffer_load_dwordx4 v1, s[{sWS}:{sWS+3}], s97 offen sc1 lds", tag="P")
            L(f"buffer_load_dwordx4 v1, s[{sWS}:{sWS+3}], s97 offen offset:1024 sc1 lds", tag="P")
    L(f"s_lshl_b32 s3, s{sG2}, 3\ns_add_u32 s3, s3, s{sM2}\ns_lshl_b32 s96, s3, 7\ns_add_u32 s96, s96, {RFLAG}\ns_mul_i32 s97, s3, 57344\ns_add_u32 s97, s97, {MBOX}")
    L(f"s_lshl_b32 s3, s{sLW}, 10\ns_add_u32 s97, s97, s3\nv_and_b32 v41, 7, v2\nv_lshlrev_b32 v41, 2, v41")
    L(f"s_lshr_b32 s3, s{sM2}, 1\ns_lshl_b32 s92, s{sBG}, 2\ns_add_u32 s3, s3, s92\ns_mul_i32 s92, s3, {32*1792}\ns_mul_i32 s3, s{sBR}, 896\ns_add_u32 s92, s92, s3")
    L(f"s_and_b32 s3, s{sHH}, 1\ns_mul_i32 s3, s3, 448\ns_add_u32 s92, s92, s3\ns_and_b32 s3, s{sM2}, 1\ns_mul_i32 s3, s3, 224\ns_add_u32 s92, s92, s3\ns_lshl_b32 s3, s{sLW}, 5\ns_add_u32 s92, s92, s3")
    L(f"v_and_b32 v3, 15, v2\nv_mul_u32_u24 v3, 1792, v3\nv_lshrrev_b32 v4, 4, v2\nv_lshl_add_u32 v3, v4, 3, v3\ns_add_u32 s93, s92, {16*1792}")
    L("s_mov_b32 s98, 0")
    L.raw(f"L_rspin:\nbuffer_load_dword v42, v41, s[{sWS}:{sWS+3}], s96 offen sc1\ns_add_u32 s98, s98, 1\ns_cmp_gt_u32 s98, {SPIN}\ns_cbranch_scc1 L_rok\ns_waitcnt vmcnt(0)\nv_cmp_ne_u32 vcc, s{sNONCE}, v42\ns_cbranch_vccnz L_rspin\nL_rok:")
    L.vm = []
    if stamps and "E" in stamps: L(f"s_memrealtime s[{70+2*stamps['E']}:{71+2*stamps['E']}]")
    def loads(base):
        for src in range(8):
            L(f"buffer_load_dwordx4 {vr(base+4*src)}, v1, s[{sWS}:{sWS+3}], s99 offen sc1")
            if src < 7: L(f"s_add_u32 s99, s99, 7168")
    def reduce(base, acc, coff):
        t0, t1 = acc + 8, acc + 9
        for src in range(8):
            for j in range(4):
                r = base + 4*src + j
                if src == 0:
                    L(f"v_lshlrev_b32 v{acc+2*j}, 16, v{r}\nv_and_b32 v{acc+2*j+1}, 0xffff0000, v{r}")
                else:
                    L(f"v_lshlrev_b32 v{t0}, 16, v{r}\nv_and_b32 v{t1}, 0xffff0000, v{r}\nv_add_f32 v{acc+2*j}, v{acc+2*j}, v{t0}\nv_add_f32 v{acc+2*j+1}, v{acc+2*j+1}, v{t1}")
        for j in range(4): L(f"v_cvt_pk_bf16_f32 v{acc+j}, v{acc+2*j}, v{acc+2*j+1}")
        L(f"buffer_store_dwordx2 {vr(acc,2)}, v3, s[{sOUT}:{sOUT+3}], s92 offen offset:{coff}")
        L(f"buffer_store_dwordx2 {vr(acc+2,2)}, v3, s[{sOUT}:{sOUT+3}], s93 offen offset:{coff}")
    L("s_mov_b32 s99, s97"); loads(44)
    L(f"s_cmp_eq_u32 s{sLW}, 3\ns_cbranch_scc1 L_one")
    L("s_add_u32 s99, s97, 4096"); loads(76)
    reduce(44, 108, 0); reduce(76, 120, 128)
    L("s_branch L_fin")
    L.raw("L_one:")
    L.vm = [(None, set(range(44+4*k, 48+4*k))) for k in range(8)]
    reduce(44, 108, 0)
    L(f"s_cmp_lg_u32 s{sH}, 0\ns_cbranch_scc1 L_fin")
    L(f"v_cmp_eq_u32 vcc, 0, v2\nv_mov_b32 v4, 0x80000000\nv_mov_b32 v5, 0\nv_cndmask_b32 v4, v4, v5, vcc\nv_mov_b32 v5, s{sNONCE}")
    L(f"s_lshl_b32 s3, s{sBR}, 3\ns_add_u32 s3, s3, s{sBG}\ns_lshl_b32 s3, s3, 7\nbuffer_store_dword v5, v4, s[{sWS}:{sWS+3}], s3 offen sc1")
    L.raw("L_fin:")
    if stamps:
        if "F" in stamps: L(f"s_waitcnt vmcnt(0)\ns_memrealtime s[{70+2*stamps['F']}:{71+2*stamps['F']}]")
        put_stamps(L, 8, 8)
    if P["padto"]:
        L.raw(f"s_waitcnt vmcnt(0) lgkmcnt(0)\ns_add_u32 s70, s70, {P['padto']*100}\nL_pad:\ns_memrealtime s[72:73]\ns_waitcnt lgkmcnt(0)\ns_sub_u32 s74, s72, s70\ns_cmp_lt_i32 s74, 0\ns_cbranch_scc1 L_pad")
    L.raw("L_end:\ns_endpgm")
    out.append(L.text())
    info["loader_instrs"] = len(L.ins)
    body = "\n".join(out)
    txt = f"""{HEADER}; @launch grid=(256,1,1) block=(512,1,1) lds=163840
; generated by my own generator script (gen/gen.py); params: {json.dumps({k: P[k] for k in P if k != 'stamps'})}
.amdgcn_target "amdgcn-amd-amdhsa--gfx950"
.text
.globl {NAME}
.p2align 8
.type {NAME},@function
{NAME}:
{body}
.section .rodata,"a"
.p2align 6
.amdhsa_kernel {NAME}
  .amdhsa_next_free_vgpr 256
  .amdhsa_next_free_sgpr 102
  .amdhsa_accum_offset 256
  .amdhsa_group_segment_fixed_size 0
  .amdhsa_kernarg_size 104
  .amdhsa_user_sgpr_count 2
  .amdhsa_user_sgpr_kernarg_segment_ptr 1
  .amdhsa_system_sgpr_workgroup_id_x 1
.end_amdhsa_kernel
"""
    return txt, info

if __name__ == "__main__":
    kw = json.loads(sys.argv[2]) if len(sys.argv) > 2 else {}
    txt, info = gen(**kw)
    open(sys.argv[1], "w").write(txt)
    print(info, len(txt))
```

```python
import sys, json
from isa import Stream, I
NAME = "concat_heads__gqa_block_cached__mha_block_cached__near_ridge_kernel"
HEADER = open("concat_heads__gqa_block_cached__mha_block_cached__near_ridge.s.ref").read().split("; @launch")[0]

DEF = dict(D=3, PD=2, rot1=0, rot2=0, pW="", pX="", pK="nt", pV="", pVB="", pO="", kbar=12,
           classes=[{"K": {3: [0, 1], 6: [2, 3]}}], clsel="bg", wsoff=0, stamps=0, prefetch_code=0, prio=0, lprio=0, budget=2,
           padto=0, enc=None, trace=0, noload=0, nomfma=0, merge=1, lat=7, touch=0, pflag=20, probe=None)
LW, LX, LK = 0, 65536, 98304
LP = LK + 16384
EPOCH, PFLAG, RFLAG, STAMP, PBUF, MBOX, WSSZ = 0, 0x1000, 0x10000, 0x20000, 0x100000, 0x400000, 0x1400000
SPIN = 200000
sWAVE, sBR, sHG, sBG, sHH, sH, sBST, sKVS = 30, 31, 32, 33, 34, 35, 36, 37
sW, sX, sK, sV, sO, sWS, sOUT = 40, 44, 48, 52, 56, 60, 64
sNONCE = 68
MF = "v_mfma_f32_16x16x32_bf16"
def vr(a, n=4): return f"v[{a}:{a+n-1}]"

def sched(st, mf, items, budget):
    heads = [0]*len(items); n = len(mf)
    sufs = []
    for ch in items:
        a = [0]*len(ch); b = [0]*len(ch); ms = mh = 10**9
        for j in range(len(ch)-1, -1, -1):
            ms = min(ms, ch[j][1]); mh = min(mh, ch[j][2]); a[j] = ms; b[j] = mh
        sufs.append((a, b))
    for p in range(-1, n):
        if p >= 0: st(mf[p])
        room = budget(p) if p >= 0 else 10**9
        while True:
            best = None
            for ci, ch in enumerate(items):
                h = heads[ci]
                if h < len(ch) and ch[h][0] <= p:
                    key = (0 if sufs[ci][1][h] <= p+1 else 1, sufs[ci][0][h])
                    if best is None or key < best[0]: best = (key, ci)
            if best is None: break
            key, ci = best
            r, sd, hd, x, c = items[ci][heads[ci]]
            if key[0] and room < c and p < n-1: break
            x() if callable(x) else st(x)
            room -= c; heads[ci] += 1
    for ci, ch in enumerate(items):
        assert heads[ci] == len(ch), ("unscheduled", ch[heads[ci]])

def gen(**kw):
    P = dict(DEF); P.update(kw)
    D, PD, LAT, MERGE = P["D"], P["PD"], P["lat"], P["merge"]
    stamps = P["stamps"]; enc = P["enc"]
    if enc: stamps = {enc[1]: 1}
    NB = 29 if MERGE else 30
    out = []
    c = Stream()
    c("s_cmp_ge_u32 s2, 256\ns_cbranch_scc1 L_end")
    if stamps or P["padto"] or P["trace"]: c("s_memrealtime s[70:71]\ns_memtime s[72:73]")
    c("s_load_dwordx16 s[4:19], s[0:1], 0\ns_load_dwordx8 s[20:27], s[0:1], 64\ns_load_dwordx2 s[28:29], s[0:1], 96")
    c(f"v_lshrrev_b32 v1, 6, v0\nv_and_b32 v2, 63, v0\nv_readfirstlane_b32 s{sWAVE}, v1")
    c(f"s_and_b32 s{sBR}, s2, 1\ns_bfe_u32 s{sHG}, s2, 0x20001")
    c(f"s_lshr_b32 s{sBG}, s2, 5\ns_bfe_u32 s{sHH}, s2, 0x20003\ns_lshl_b32 s{sH}, s{sHG}, 2\ns_add_u32 s{sH}, s{sH}, s{sHH}")
    c(f"s_lshl_b32 s{sBST}, 0x20000, s{sBR}\ns_sub_u32 s{sKVS}, 1, s{sBR}")
    c(f"s_cmp_ge_u32 s{sWAVE}, 4\ns_cbranch_scc1 L_loader")
    out.append(c.text())

    def ws_srd(s):
        s(f"s_add_u32 s{sWS}, s28, {P['wsoff']}\ns_addc_u32 s{sWS+1}, s29, 0\ns_and_b32 s{sWS+1}, s{sWS+1}, 0xffff\ns_mov_b32 s{sWS+2}, {WSSZ}\ns_mov_b32 s{sWS+3}, 0x20000")
    def load_nonce(s):
        s(f"s_lshl_b32 s3, s{sBR}, 3\ns_add_u32 s3, s3, s{sBG}\ns_lshl_b32 s3, s3, 7\ns_add_u32 s38, s{sWS}, s3\ns_addc_u32 s39, s{sWS+1}, 0")
        s(f"s_load_dword s{sNONCE}, s[38:39], {EPOCH}")
    def group_regs(s, sg, sm):
        s(f"s_lshl_b32 s{sg}, s{sBR}, 3\ns_add_u32 s{sg}, s{sg}, s{sBG}\ns_lshl_b32 s{sg}, s{sg}, 1\ns_and_b32 s3, s{sHH}, 1\ns_add_u32 s{sg}, s{sg}, s3")
        s(f"s_lshl_b32 s{sm}, s{sHG}, 1\ns_lshr_b32 s3, s{sHH}, 1\ns_add_u32 s{sm}, s{sm}, s3")
    def lane0_off(s, dst, tmp):
        s(f"v_mbcnt_lo_u32_b32 v{tmp}, -1, 0\nv_mbcnt_hi_u32_b32 v{tmp}, -1, v{tmp}\nv_min_u32 v{tmp}, 1, v{tmp}\nv_lshlrev_b32 v{dst}, 31, v{tmp}")
    def put_stamps(s, n, tmp):
        s("s_waitcnt lgkmcnt(0)")
        s(f"s_lshl_b32 s3, s2, 3\ns_add_u32 s3, s3, s{sWAVE}\ns_lshl_b32 s3, s3, 6\ns_add_u32 s3, s3, {STAMP}")
        lane0_off(s, tmp+4, tmp+5)
        for j in range(0, n, 2):
            for q in range(4): s(f"v_mov_b32 v{tmp+q}, s{70+2*j+q}")
            s(f"buffer_store_dwordx4 {vr(tmp)}, v{tmp+4}, s[{sWS}:{sWS+3}], s3 offen offset:{8*j}")
    def stamp(s, label):
        if stamps and label in stamps: s(f"s_memrealtime s[{70+2*stamps[label]}:{71+2*stamps[label]}]")

    s = Stream()
    vB0 = 3; aW = 8; aX = 16; AB = 20; BB = 36; F = 68
    NAB = 3 if PD == 2 else 4
    if P["prio"]: s(f"s_setprio {P['prio']}")
    sBP, sDH, sT5, sG, sM, sO0, sO1, sF0, sF1, sPB, sPF, sLP, sSX = 4, 5, 6, 14, 15, 16, 17, 18, 19, 20, 21, 24, 25
    s(f"v_lshrrev_b32 v4, 4, v2\nv_bfe_u32 v5, v2, 2, 2\nv_and_b32 v6, 3, v2\nv_and_b32 v7, 15, v2")
    s(f"v_lshl_add_u32 v{vB0}, v4, 3, v5\nv_lshlrev_b32 v{vB0}, 9, v{vB0}\nv_lshl_add_u32 v{vB0}, v6, 3, v{vB0}\nv_lshl_add_u32 v{vB0}, v5, 5, v{vB0}")
    s(f"v_and_b32 v0, 1, v4\nv_lshl_add_u32 v{vB0}, v0, 7, v{vB0}")
    s(f"s_and_b32 s76, s{sWAVE}, 1\ns_lshr_b32 s77, s{sWAVE}, 1\ns_lshl_b32 s3, s77, 8")
    for T in range(8):
        s(f"s_add_u32 s78, s3, {T<<5}\nv_xor_b32 v{aW+T}, s78, v{vB0}")
    s(f"v_lshrrev_b32 v0, 1, v7\nv_xor_b32 v0, v0, v4\nv_lshlrev_b32 v0, 4, v0\nv_lshl_add_u32 v0, v7, 7, v0")
    s(f"s_lshl_b32 s78, s76, 13\ns_lshl_b32 s79, s77, 12\ns_add_u32 s78, s78, s79\ns_add_u32 s78, s78, {LX}")
    s(f"v_add_u32 v{aX}, s78, v0\nv_xor_b32 v{aX+1}, 64, v{aX}\nv_xor_b32 v{aX+2}, 0x1000, v{aX}\nv_xor_b32 v{aX+3}, 0x1000, v{aX+1}")
    s(f"v_lshrrev_b32 v0, 1, v4\nv_xor_b32 v0, v0, v7\nv_lshlrev_b32 v0, 4, v0\nv_lshl_add_u32 v0, v7, 9, v0\nv_and_b32 v1, 1, v4\nv_lshl_add_u32 v0, v1, 3, v0")
    s(f"s_lshl_b32 s78, s76, 15\ns_lshl_b32 s79, s77, 8\ns_add_u32 s78, s78, s79\ns_add_u32 s78, s78, {LK}\nv_add_u32 v1, s78, v0")
    s("s_waitcnt lgkmcnt(0)")
    s(f"s_mov_b32 s{sBP}, s76\ns_mov_b32 s{sDH}, s77\ns_mov_b32 s{sSX}, s78")
    ws_srd(s); load_nonce(s)
    s(f"s_and_b32 s23, s{sHH}, 1\ns_lshl_b32 s23, s23, 6\ns_mul_i32 s{sT5}, s{sDH}, {7<<5}\ns_add_u32 s{sT5}, s{sT5}, s23")
    for t in range(1, 7): s(f"s_add_u32 s{sT5+t}, s{sT5}, {t<<5}")
    group_regs(s, sG, sM)
    s(f"s_lshl_b32 s22, s{sBP}, 2\ns_mul_i32 s23, s{sDH}, 3\ns_add_u32 s22, s22, s23\ns_xor_b32 s23, s22, 2\ns_lshl_b32 s3, s{sG}, 3\ns_add_u32 s22, s22, s3\ns_add_u32 s23, s23, s3")
    s(f"s_mul_i32 s3, s{sM}, 7168\ns_add_u32 s3, s3, {MBOX}\ns_mul_i32 s{sO0}, s22, 57344\ns_add_u32 s{sO0}, s{sO0}, s3\ns_mul_i32 s{sO1}, s23, 57344\ns_add_u32 s{sO1}, s{sO1}, s3")
    s(f"s_lshl_b32 s3, s{sM}, 2\ns_add_u32 s3, s3, {RFLAG}\ns_lshl_b32 s{sF0}, s22, 7\ns_add_u32 s{sF0}, s{sF0}, s3\ns_lshl_b32 s{sF1}, s23, 7\ns_add_u32 s{sF1}, s{sF1}, s3")
    s(f"s_lshl_b32 s22, s{sBP}, 1\ns_add_u32 s22, s22, s{sDH}\ns_lshl_b32 s{sPB}, s2, 13\ns_lshl_b32 s23, s22, 11\ns_add_u32 s{sPB}, s{sPB}, s23\ns_add_u32 s{sPB}, s{sPB}, {PBUF}")
    s(f"s_lshl_b32 s{sPF}, s2, 7\ns_lshl_b32 s23, s22, 2\ns_add_u32 s{sPF}, s{sPF}, s23\ns_add_u32 s{sPF}, s{sPF}, {PFLAG}")
    s(f"s_lshl_b32 s{sLP}, s22, 11\ns_add_u32 s{sLP}, s{sLP}, {LP}\ns_mov_b32 s26, 0x3db8aa3b")

    accT = {0:128, 1:240, 2:144, 3:160, 4:176, 5:192, 6:208, 7:224}
    acc1 = lambda T, qt: accT[T] + 4*qt
    accN = lambda t, k4: 128 + 16*t + 4*k4
    NA = lambda l, t: F + 4*(l*7 + t)
    mf = []; items = []; stepstart = {}; tiles = []
    def add_tile(i, t):
        tiles.append((i, t, len(mf))); ab = AB + 4*((len(tiles)-1) % NAB)
        for k in range(4):
            if i < 14:
                a = acc1(t, k); mf.append(f"{MF} {vr(a)}, {vr(ab)}, {vr(BB+16*(i%2)+4*k)}, {'0' if i == 0 else vr(a)}")
            else:
                a = accN(t, k); mf.append(f"{MF} {vr(a)}, {vr(BB+16*(i%2)+4*k)}, {vr(ab)}, {'0' if i in (14, 22) else vr(a)}")
    for i in range(14):
        stepstart[i] = len(mf)
        for T in range(8): add_tile(i, T)
    S0 = len(mf); SK, SS = 240, 160
    def kfr(l, kt, sx):
        j = sx*4 + l*2 + kt
        return F + 4*j if j < 15 else 4
    for sx in range(4):
        for l in (1, 0):
            for kt in range(2):
                for q2 in range(2):
                    d = (SK, SS)[l] + 8*kt + 4*q2
                    mf.append(f"{MF} {vr(d)}, {vr(kfr(l,kt,sx))}, {vr(acc1(2*sx, 2*l+q2))}, {'0' if sx == 0 else vr(d)}")
    for i in range(14, 28 if MERGE else 30):
        stepstart[i] = len(mf)
        for t in range(7): add_tile(i, t)
    PRl1 = [16, 32, 124, 4] if (MERGE and NAB == 3) else None
    def PR(l, hd, q):
        if l == 0: return 240 + 8*hd + 4*q
        return PRl1[2*hd+q] if MERGE else BB + 8*hd + 4*q
    fin = {}
    tdone = {}
    def add_final(l, t, d0, d1):
        fin[l, t] = (len(mf), d0, d1)
        mf.append(f"{MF} {vr(d0)}, {vr(NA(l,t))}, {vr(PR(l,0,0))}, 0")
        mf.append(f"{MF} {vr(d1)}, {vr(NA(l,t))}, {vr(PR(l,0,1))}, 0")
        mf.append(f"{MF} {vr(d0)}, {vr(accN(t,2*l))}, {vr(PR(l,1,0))}, {vr(d0)}")
        mf.append(f"{MF} {vr(d1)}, {vr(accN(t,2*l))}, {vr(PR(l,1,1))}, {vr(d1)}")
    if MERGE:
        assert NAB == 3
        stepstart[28] = len(mf)
        def ft(t):
            add_final(0, t, accN(t,1), accN(t,3)); add_final(1, t, NA(0,t), accN(t,0))
        add_tile(28, 0); add_tile(28, 1); stepstart[29] = len(mf)
        add_tile(29, 0); tdone[0] = len(mf)-1; add_tile(29, 1); tdone[1] = len(mf)-1
        for t in range(2, 7):
            add_tile(28, t); add_tile(29, t); tdone[t] = len(mf)-1; ft(t-2)
        ft(5); ft(6)
        order = [(l, t) for t in range(7) for l in range(2)]
    else:
        for t in range(7): tdone[t] = stepstart[29] + 4*t + 3
        order = [(l, t) for l in range(2) for t in range(7)]
        DB = [AB, AB+8] if NAB == 4 else [AB, 12]
        for gi, (l, t) in enumerate(order): add_final(l, t, DB[gi%2], DB[gi%2]+4)
    NM = len(mf)
    ntile = lambda i: 8 if i < 14 else 7
    barpos = {0: -1}
    for i in range(NB-1): barpos[i+1] = stepstart[i] + 4*(ntile(i)-PD) - 1
    def bar(label, pre=None):
        def f():
            if pre: pre()
            s("s_barrier"); stamp(s, label)
        return f
    ev = []
    for k in range(NB):
        pre = (lambda: s("s_waitcnt lgkmcnt(0)")) if (D == 4 and k > 0) else None
        if k == 6: pre = lambda: s(f"s_waitcnt lgkmcnt(0)\ns_add_u32 s{sNONCE}, s{sNONCE}, 0x9E3779B9")
        if MERGE and k == 26: pre = lambda: s("s_waitcnt lgkmcnt(0)")
        ev.append((barpos[k], 0, barpos[k], barpos[k]+1, bar(f"B{k}", pre), 1))
    for gi, (i, T, m0) in enumerate(tiles):
        ab = AB + 4*(gi % NAB)
        pos = tiles[gi-PD][2] if gi >= PD else -1
        if gi >= NAB: pos = max(pos, tiles[gi-NAB][2] + 3)
        slot = LW + (i % 4)*16384
        sd = m0 - LAT
        if i == 14: ev.append((pos, 1, sd, m0, f"v_xor_b32 v{aW+T}, s{sT5+T}, v{vB0}", 1))
        ev.append((pos, 2, sd, m0, f"ds_read_b64_tr_b16 {vr(ab,2)}, v{aW+T} offset:{slot}", 1))
        ev.append((pos+1 if pos >= 0 else -1, 2, sd, m0, f"ds_read_b64_tr_b16 {vr(ab+2,2)}, v{aW+T} offset:{slot+2048}", 1))
    for i in range(30):
        for q4 in range(4):
            if i == 29 and MERGE: pos = stepstart[28] + q4//2
            else: pos = barpos[i] + (2, 3, 4, 5)[q4] if i > 0 else -1
            off = ((i//2) % 2)*16384 + (q4 % 2)*2048
            use = stepstart[i] + q4
            ev.append((pos, 3, use - LAT, use, f"ds_read_b128 {vr(BB+16*(i%2)+4*q4)}, v{aX+2*(q4//2)+(i%2)} offset:{off}", 1))
    ev.sort(key=lambda e: (e[0], e[1]))
    items.append([(e[0], e[2], e[3], e[4], e[5]) for e in ev])
    ch = []; kb = barpos[P["kbar"]]
    for sx in range(4):
        for e in range(2):
            use = S0 + 8*sx
            ch.append((kb, use - LAT - 30, use, f"v_xor_b32 v0, {(4*sx+2*e) << 4}, v1", 1))
            for l in (1, 0):
                for kt in range(2):
                    ch.append((kb, use - LAT - 30, use, f"ds_read_b64 {vr(kfr(l,kt,sx)+2*e,2)}, v0 offset:{l*16384 + kt*8192}", 1))
    items.append(ch)
    cvt = lambda d, a: f"v_cvt_pk_bf16_f32 v{d}, v{a}, v{a+1}"
    for sx in range(4):
        ch = []
        rdy = stepstart[13] + 8*sx + 7 + (2 if sx < 3 else 3)
        for qt in (2, 3, 0, 1):
            a, b = acc1(2*sx, qt), acc1(2*sx+1, qt)
            dl = S0 + 8*sx + (0 if qt >= 2 else 4)
            if sx == 0: dl = min(dl, S0 + (0 if qt >= 2 else 4))
            if sx == 1: dl = S0
            ch += [(rdy, dl-1, dl, x, 1) for x in (cvt(a, a), cvt(a+1, a+2), cvt(a+2, b), cvt(a+3, b+2))]
        items.append(ch)
    ch = []; p14 = stepstart[14]; R = F; T0 = F + 16
    for x in ("v_lshrrev_b32 v0, 4, v2", "v_lshlrev_b32 v0, 9, v0", "v_and_b32 v1, 15, v2", "v_lshl_add_u32 v0, v1, 4, v0", f"v_add_u32 v0, s{sSX}, v0"):
        ch.append((S0+24, p14-2, p14, x, 1))
    for j in range(4):
        ch.append((S0+30, p14+2, p14+6, (lambda j=j: s(f"ds_write_b128 v0, {vr(SS+4*j)} offset:{2048*j}", tag="SW")), 1))
    bs = p14 + 10
    def bS():
        s.wait_lds_tag("SW"); s("s_barrier"); stamp(s, "BS")
    ch.append((p14+1, bs, bs+1, "v_xor_b32 v0, 0x100, v0", 1))
    ch.append((bs, bs, bs+1, bS, 2))
    dl = stepstart[19]
    for j in range(4): ch.append((bs, bs+4, dl, f"ds_read_b128 {vr(R+4*j)}, v0 offset:{2048*j}", 1))
    rd = bs + 12
    sm = [f"v_add_f32 v{SK+j}, v{SK+j}, v{R+j}" for j in range(16)]
    sv = lambda q2: [SK + 8*kt + 4*q2 + r for kt in range(2) for r in range(4)]
    M = [T0, T0+1]; Tm = [T0+2, T0+3]; SU = [T0+4, T0+5]; PF = T0 + 8
    def both(f):
        for q2 in range(2): sm.append(f(q2))
    both(lambda q: f"v_max3_f32 v{M[q]}, v{sv(q)[0]}, v{sv(q)[1]}, v{sv(q)[2]}")
    both(lambda q: f"v_max3_f32 v{M[q]}, v{M[q]}, v{sv(q)[3]}, v{sv(q)[4]}")
    both(lambda q: f"v_max3_f32 v{M[q]}, v{M[q]}, v{sv(q)[5]}, v{sv(q)[6]}")
    both(lambda q: f"v_max_f32 v{M[q]}, v{M[q]}, v{sv(q)[7]}")
    for pl in ("v_permlane32_swap_b32", "v_permlane16_swap_b32"):
        both(lambda q: f"v_mov_b32 v{Tm[q]}, v{M[q]}"); both(lambda q: f"{pl} v{M[q]}, v{Tm[q]}"); both(lambda q: f"v_max_f32 v{M[q]}, v{M[q]}, v{Tm[q]}")
    both(lambda q: f"v_mul_f32 v{M[q]}, s26, v{M[q]}")
    for j in range(8): both(lambda q: f"v_fma_f32 v{sv(q)[j]}, v{sv(q)[j]}, s26, -v{M[q]}")
    for j in range(8): both(lambda q: f"v_exp_f32 v{sv(q)[j]}, v{sv(q)[j]}")
    both(lambda q: f"v_add_f32 v{SU[q]}, v{sv(q)[0]}, v{sv(q)[1]}")
    for j in range(2, 8): both(lambda q: f"v_add_f32 v{SU[q]}, v{SU[q]}, v{sv(q)[j]}")
    for pl in ("v_permlane32_swap_b32", "v_permlane16_swap_b32"):
        both(lambda q: f"v_mov_b32 v{Tm[q]}, v{SU[q]}"); both(lambda q: f"{pl} v{SU[q]}, v{Tm[q]}"); both(lambda q: f"v_add_f32 v{SU[q]}, v{SU[q]}, v{Tm[q]}")
    both(lambda q: f"v_rcp_f32 v{SU[q]}, v{SU[q]}")
    for j in range(8): both(lambda q: f"v_mul_f32 v{sv(q)[j]}, v{sv(q)[j]}, v{SU[q]}")
    for j in range(4): both(lambda q: cvt(PF+4*q+j, sv(q)[2*j]))
    sm += ["v_lshlrev_b32 v1, 4, v2", f"v_add_u32 v0, s{sLP}, v1"]
    for q in range(2):
        sm.append(f"ds_write_b128 v0, {vr(PF+4*q)} offset:{1024*q}")
        sm.append(f"buffer_store_dwordx4 {vr(PF+4*q)}, v1, s[{sWS}:{sWS+3}], s{sPB} offen offset:{1024*q} sc1")
    sm += ["v_min_u32 v2, 1, v2", "v_lshlrev_b32 v2, 31, v2", f"v_mov_b32 v3, s{sNONCE}", "v_xor_b32 v15, 0x800, v0"]
    for x in sm: ch.append((rd, dl, dl, x, 2 if x.startswith("v_exp") or x.startswith("v_rcp") else 1))
    fp = stepstart[P["pflag"]]
    ch.append((fp, fp+2, fp+8, f"s_waitcnt vmcnt(0)\nbuffer_store_dword v3, v2, s[{sWS}:{sWS+3}], s{sPF} offen sc1", 2))
    items.append(ch)
    ch = []
    for t in range(7):
        rdy = stepstart[21] + 4*t + 3 + 3; dl = stepstart[22] + 4*t
        for l in range(2):
            a, b, d = accN(t, 2*l), accN(t, 2*l+1), NA(l, t)
            ch += [(rdy, dl-1, dl, x, 1) for x in (cvt(d, a), cvt(d+1, a+2), cvt(d+2, b), cvt(d+3, b+2))]
    items.append(ch)
    ch = []
    prdy = (stepstart[28] + 3) if MERGE else stepstart[29] + 1
    for l in range(2):
        for hd in range(2):
            for q in range(2):
                use = fin[l, 0][0]
                ch.append((prdy if not (MERGE and l) else stepstart[29] + 3, use - LAT - 4, use, f"ds_read_b128 {vr(PR(l,hd,q))}, v{(0,15)[l]} offset:{hd*8192 + q*1024}", 1))
    items.append(ch)
    ch = []
    for (l, t) in order:
        rdy = tdone[t] + 3; a, b = accN(t, 2*l), accN(t, 2*l+1)
        dl = fin[0, t][0] if MERGE else fin[l, t][0] + 2
        ch += [(min(rdy, dl-1), dl-1, dl, x, 1) for x in (cvt(a, a), cvt(a+1, a+2), cvt(a+2, b), cvt(a+3, b+2))]
    items.append(ch)
    ch = []; cnt = [0, 0]
    for gi, (l, t) in enumerate(order):
        m0, d0, d1 = fin[l, t]
        rdy = min(m0 + 3 + 3, NM-1)
        dl = NM if MERGE else min(fin[order[gi+2]][0] if gi+2 < 14 else NM, NM)
        sdl = min(m0 + 12, dl)
        ch += [(rdy, sdl, dl, x, 1) for x in (cvt(d0, d0), cvt(d0+1, d0+2), cvt(d0+2, d1), cvt(d0+3, d1+2))]
        so = (sO0, sO1)[l]
        pre = f"s_add_u32 s{so}, s{so}, 4096\n" if t == 4 else ""
        ch.append((rdy, sdl, dl, (lambda x=pre + f"buffer_store_dwordx4 {vr(d0)}, v1, s[{sWS}:{sWS+3}], s{so} offen offset:{1024*(t%4)} sc1", l=l: s(x, tag=f"O{l}")), 1))
    items.append(ch)
    if P["nomfma"]:
        mf = ["s_nop 0"]*len(mf); items[0] = [e for e in items[0] if callable(e[3])]
    firsts = set(m for (_, _, m) in tiles)
    sched(s, mf, items, lambda p: P["budget"] - (1 if (p+1) in firsts else 0))
    stamp(s, "E")
    s.wait_vm_tags({"O0"})
    s(f"buffer_store_dword v3, v2, s[{sWS}:{sWS+3}], s{sF0} offen sc1")
    s.wait_vm_tags({"O1"})
    s(f"buffer_store_dword v3, v2, s[{sWS}:{sWS+3}], s{sF1} offen sc1")
    if stamps:
        stamp(s, "F")
        if not enc: put_stamps(s, 8, 8)
    if enc and enc[0] == "c":
        s.raw(f"s_waitcnt vmcnt(0) lgkmcnt(0)\ns_add_u32 s72, s72, 3000\nL_padc:\ns_memrealtime s[74:75]\ns_waitcnt lgkmcnt(0)\ns_sub_u32 s76, s74, s72\ns_cmp_lt_i32 s76, 0\ns_cbranch_scc1 L_padc")
    s("s_endpgm")
    out.append(s.text())
    info = dict(compute_instrs=len(s.ins), nops=s.nnop, waits=s.nwait, mfma=NM)

    L = Stream()
    L("L_loader:")
    if P["lprio"]: L(f"s_setprio {P['lprio']}")
    sLW = 69
    L(f"s_sub_u32 s{sLW}, s{sWAVE}, 4")
    vWq, vWo, vXx, vXv, vKk, vST = 8, 12, 16, 20, 24, 128
    L(f"v_lshrrev_b32 v3, 5, v2\nv_and_b32 v4, 31, v2\ns_and_b32 s3, s{sLW}, 1\ns_lshl_b32 s3, s3, 3\ns_lshl_b32 s38, s{sLW}, 3")
    for p in range(4):
        L(f"v_add_u32 v5, {(2*p)&3}, v3\nv_lshlrev_b32 v5, 1, v5\nv_or_b32 v5, s3, v5\nv_xor_b32 v5, v5, v4\nv_lshlrev_b32 v5, 4, v5")
        L(f"v_add_u32 v6, {2*p}, v3\nv_add_u32 v6, s38, v6\nv_lshl_add_u32 v{vWq+p}, v6, 13, v5\nv_mul_u32_u24 v6, 896, v6\nv_add_u32 v{vWo+p}, v6, v5")
        if p: L(f"v_subrev_u32 v{vWq+p}, {1024*p}, v{vWq+p}\nv_subrev_u32 v{vWo+p}, {1024*p}, v{vWo+p}")
    L(f"v_lshrrev_b32 v3, 3, v2\nv_and_b32 v4, 7, v2\nv_lshrrev_b32 v7, 4, v2\nv_xor_b32 v4, v4, v7\ns_lshl_b32 s38, s{sLW}, 5")
    for p in range(4):
        L(f"v_xor_b32 v5, {(p&1)<<2}, v4\nv_lshlrev_b32 v5, 4, v5\nv_add_u32 v6, {8*p}, v3\nv_lshl_add_u32 v{vXv+p}, v6, 9, v5")
        L(f"v_add_u32 v6, s38, v6\nv_mul_u32_u24 v6, 896, v6\nv_add_u32 v{vXx+p}, v6, v5")
        if p: L(f"v_subrev_u32 v{vXv+p}, {1024*p}, v{vXv+p}\nv_subrev_u32 v{vXx+p}, {1024*p}, v{vXx+p}")
    sJ1, sWo_, sXo_, sKo, sKo2, sKm, sM0W, sM0X, sJW, sJX, sWb, sXb, sJ2, sVa, sVb = 93, 4, 5, 6, 7, 8, 86, 87, 88, 89, 90, 91, 92, 9, 10
    L(f"s_lshl_b32 s{sM0W}, s{sLW}, 12\ns_add_u32 s{sM0X}, s{sM0W}, {LX}")
    r1 = P["rot1"]
    if r1 == 7:
        L(f"s_lshl_b32 s3, s{sHH}, 1\ns_add_u32 s{sJ1}, s3, s{sBG}")
        for _ in range(2): L(f"s_cmp_ge_u32 s{sJ1}, 7\ns_cselect_b32 s3, 7, 0\ns_sub_u32 s{sJ1}, s{sJ1}, s3")
    elif r1 == 4: L(f"s_add_u32 s3, s{sHH}, s{sBG}\ns_and_b32 s3, s3, 3\ns_lshl_b32 s{sJ1}, s3, 1")
    elif r1 == 2: L(f"s_xor_b32 s3, s{sHH}, s{sBG}\ns_and_b32 s3, s3, 1\ns_lshl_b32 s{sJ1}, s3, 2")
    elif r1 == 3: L(f"s_add_u32 s3, s{sHH}, s{sBG}\ns_mul_i32 s{sJ1}, s3, 0x5556\ns_lshr_b32 s{sJ1}, s{sJ1}, 16\ns_mul_i32 s{sJ1}, s{sJ1}, 3\ns_sub_u32 s3, s3, s{sJ1}\ns_mul_i32 s{sJ1}, s3, 5\ns_lshr_b32 s{sJ1}, s{sJ1}, 1")
    else: L(f"s_mov_b32 s{sJ1}, 0")
    r2 = P["rot2"]
    if r2 == 4: L(f"s_and_b32 s{sJ2}, s{sBG}, 3")
    elif r2 == 2: L(f"s_and_b32 s{sJ2}, s{sBG}, 1\ns_lshl_b32 s{sJ2}, s{sJ2}, 1")
    else: L(f"s_mov_b32 s{sJ2}, 0")
    L(f"s_mov_b32 s{sJW}, s{sJ1}\ns_mov_b32 s{sJX}, s{sJ1}\ns_lshl_b32 s{sWb}, s{sH}, 9\ns_mul_i32 s{sXb}, s{sBG}, {128*896}")
    L("s_waitcnt lgkmcnt(0)")
    if P["probe"]:
        lst, pol = P["probe"]
        sizes = [917504,4194304,4194304,3670016,3670016,917504,8388608,8388608,3670016,3670016]
        L(f"v_lshlrev_b32 v40, 4, v2\ns_lshl_b32 s3, s{sLW}, 12\ns_add_u32 m0, s3, {LK}")
        for n, i in enumerate(lst):
            per = sizes[i]//1024
            L(f"s_mov_b32 s{sK}, s{4+2*i}\ns_and_b32 s{sK+1}, s{5+2*i}, 0xffff\ns_mov_b32 s{sK+2}, {sizes[i]}\ns_mov_b32 s{sK+3}, 0x20000")
            L(f"s_lshl_b32 s3, s2, 2\ns_add_u32 s3, s3, s{sLW}\ns_mul_i32 s38, s3, {per}")
            for j in range((per + 1023)//1024):
                L(f"buffer_load_dwordx4 v40, s[{sK}:{sK+3}], s38 offen {pol} lds\ns_add_u32 s38, s38, 1024".replace("  ", " "))
        L("s_waitcnt vmcnt(0)"); stamp(L, "PR")
    L(f"s_cmp_eq_u32 s{sBR}, 0")
    for (dst, i) in ((sW,3),(sX,0),(sK,1),(sV,2),(sO,4)):
        L(f"s_cselect_b32 s{dst}, s{4+2*i}, s{14+2*i}\ns_cselect_b32 s{dst+1}, s{5+2*i}, s{15+2*i}")
    for dst, size in ((sW,3670016),(sX,917504)):
        L(f"s_and_b32 s{dst+1}, s{dst+1}, 0xffff\ns_mov_b32 s{dst+2}, {size}\ns_mov_b32 s{dst+3}, 0x20000")
    def mk(L):
        def dma4(vbase, srd, soff, m0expr, pol, tag):
            if P["noload"] and tag not in ("W0","W1","W2","W3","X0","X1","K"): return
            L(m0expr)
            for p in range(4):
                L(f"buffer_load_dwordx4 v{vbase+p}, s[{srd}:{srd+3}], s{soff} offen offset:{1024*p} {pol} lds".replace("  ", " "), tag=tag)
        def issueW(i):
            m0 = f"s_add_u32 m0, s{sM0W}, {LW + (i%4)*16384}"
            if i < 14:
                if i % 2 == 0:
                    L(f"s_lshl_b32 s{sWo_}, s{sJW}, 19\ns_add_u32 s{sWo_}, s{sWo_}, s{sWb}\ns_add_u32 s{sJW}, s{sJW}, 1\ns_cmp_eq_u32 s{sJW}, 7\ns_cselect_b32 s{sJW}, 0, s{sJW}")
                else: L(f"s_add_u32 s{sWo_}, s{sWo_}, {32*8192}")
                dma4(vWq, sW, sWo_, m0, P["pW"], f"W{i}")
            else:
                k = i - 14
                if k % 8 == 0:
                    L(f"s_xor_b32 s3, s{sH}, {k//8}\ns_mul_i32 s{sWb}, s3, {256*896}\ns_and_b32 s3, s{sHH}, 1\ns_mul_i32 s3, s3, 384\ns_add_u32 s{sWb}, s{sWb}, s3\ns_mov_b32 s{sJW}, s{sJ2}")
                if k % 2 == 0:
                    L(f"s_mul_i32 s{sWo_}, s{sJW}, {64*896}\ns_add_u32 s{sWo_}, s{sWo_}, s{sWb}\ns_add_u32 s{sJW}, s{sJW}, 1\ns_and_b32 s{sJW}, s{sJW}, 3")
                else: L(f"s_add_u32 s{sWo_}, s{sWo_}, {32*896}")
                dma4(vWo, sO, sWo_, m0, P["pO"], f"W{i}")
        def voff(k):
            L(f"s_add_u32 s3, s{sJ2}, {k%4}\ns_and_b32 s3, s3, 3\ns_lshl_b32 s3, s3, 7\ns_add_u32 s{sXo_}, s3, s{(sVa, sVb)[k//4]}")
        def issueX(j):
            m0 = f"s_add_u32 m0, s{sM0X}, {(j%2)*16384}"
            if j < 7:
                L(f"s_lshl_b32 s{sXo_}, s{sJX}, 7\ns_add_u32 s{sXo_}, s{sXo_}, s{sXb}\ns_add_u32 s{sJX}, s{sJX}, 1\ns_cmp_eq_u32 s{sJX}, 7\ns_cselect_b32 s{sJX}, 0, s{sJX}")
                dma4(vXx, sX, sXo_, m0, P["pX"], f"X{j}")
            else:
                voff(j-7); dma4(vXv, sV, sXo_, m0, P["pV"] if j < 11 else P["pVB"], f"X{j}")
        def issueVR(k):
            voff(k)
            for p in range(4):
                L(f"buffer_load_dwordx4 {vr(vST+16*k+4*p)}, v{vXv+p}, s[{sV}:{sV+3}], s{sXo_} offen offset:{1024*p} {P['pV'] if k < 4 else P['pVB']}".rstrip(), tag=f"VR{k}")
        def writeV(j, k):
            for p in range(4):
                L(f"ds_write_b128 v42, {vr(vST+16*k+4*p)} offset:{(j%2)*16384 + 1024*p}")
        def issueK(g):
            dma4(vKk + 4*(g%2), sK, sKo if g < 2 else sKo2, f"s_add_u32 m0, s{sKm}, {4096*g}", P["pK"], "K")
        return issueW, issueX, issueVR, writeV, issueK
    issueW, issueX, issueVR, writeV, issueK = mk(L)
    issueW(0); issueX(0); issueW(1); issueW(2); issueX(1); issueW(3)
    L(f"s_lshl_b32 s3, 0x400000, s{sBR}")
    for dst in (sK, sV): L(f"s_and_b32 s{dst+1}, s{dst+1}, 0xffff\ns_mov_b32 s{dst+2}, s3\ns_mov_b32 s{dst+3}, 0x20000")
    L(f"s_and_b32 s{sO+1}, s{sO+1}, 0xffff\ns_mov_b32 s{sO+2}, 3670016\ns_mov_b32 s{sO+3}, 0x20000")
    L(f"s_mov_b32 s{sOUT}, s24\ns_and_b32 s{sOUT+1}, s25, 0xffff\ns_mov_b32 s{sOUT+2}, {32*32*896*2}\ns_mov_b32 s{sOUT+3}, 0x20000")
    ws_srd(L); load_nonce(L)
    if P["prefetch_code"]:
        L(f"s_cmp_lg_u32 s{sLW}, 0\ns_cbranch_scc1 L_nopf\ns_getpc_b64 s[14:15]\nL_pc:\ns_sub_u32 s14, s14, L_pc-{NAME}\ns_subb_u32 s15, s15, 0")
        L(f"s_bfe_u32 s3, s2, 0x20003\ns_lshl_b32 s3, s3, 13\nv_lshl_add_u32 v5, v2, 7, s3\nv_min_u32 v5, L_end-{NAME}, v5\nglobal_load_dword v40, v5, s[14:15]", tag="PF")
        L.raw("L_nopf:"); L.vm.pop()
    L(f"v_lshrrev_b32 v3, 5, v2\nv_and_b32 v4, 31, v2\nv_bfe_u32 v7, v2, 4, 1\nv_xor_b32 v7, s{sLW}, v7\nv_mul_lo_u32 v7, v7, s{sBST}")
    for p in range(8):
        L(f"v_add_u32 v6, {2*p}, v3\nv_xor_b32 v5, v6, v4\nv_lshlrev_b32 v5, 4, v5\nv_lshl_add_u32 v5, v6, 9, v5\nv_add_u32 v{vKk+p}, v5, v7")
        if p % 4: L(f"v_subrev_u32 v{vKk+p}, {1024*(p%4)}, v{vKk+p}")
    L(f"s_lshr_b32 s3, s{sH}, s{sKVS}\ns_lshl_b32 s3, s3, 14\ns_lshl_b32 s{sKo}, s{sBG}, 2\ns_mul_i32 s{sKo}, s{sKo}, s{sBST}\ns_add_u32 s{sKo}, s{sKo}, s3\ns_add_u32 s{sKo2}, s{sKo}, 8192")
    L(f"s_mul_i32 s11, s{sLW}, s{sBST}\ns_add_u32 s{sVa}, s{sKo}, s11\ns_lshl_b32 s3, s{sBR}, 14\ns_xor_b32 s{sVb}, s{sVa}, s3")
    L(f"s_lshl_b32 s{sKm}, s{sLW}, 14\ns_add_u32 s{sKm}, s{sKm}, {LK}")
    sG2, sM2 = 94, 95
    group_regs(L, sG2, sM2)
    L(f"v_lshlrev_b32 v1, 4, v2\nv_add_u32 v42, s{sM0X}, v1")
    if P["touch"]:
        st = P["touch"]
        L(f"v_mul_u32_u24 v44, {st}, v2")
        def touch(srd, sbase, span):
            n = min(64, (span + st - 1)//st + 1)
            L(f"v_cmp_gt_u32 vcc, {n}, v2\nv_mov_b32 v45, 0x80000000\nv_min_u32 v46, {span-4}, v44\nv_cndmask_b32 v45, v45, v46, vcc")
            L(f"buffer_load_dword v47, v45, s[{srd}:{srd+3}], {sbase} offen", tag="T")
        L(f"s_cmp_eq_u32 s{sLW}, 0\ns_cbranch_scc0 L_t1")
        touch(sK, f"s{sKo}", 3*262144 + 16384); L.vm.pop()
        L(f"s_lshl_b32 s3, s{sG2}, 3\ns_mul_i32 s3, s3, 57344\ns_add_u32 s3, s3, {MBOX}")
        touch(sWS, "s3", 8*57344); L.vm.pop()
        L.raw("L_t1:")
        L(f"s_cmp_eq_u32 s{sLW}, 1\ns_cbranch_scc0 L_t2")
        touch(sV, f"s{sKo}", 3*262144 + 32768); L.vm.pop()
        L(f"s_lshl_b32 s3, s2, 13\ns_and_b32 s3, s3, 0xfffe0000\ns_add_u32 s3, s3, {PBUF}")
        touch(sWS, "s3", 131072); L.vm.pop()
        L.raw("L_t2:")
        L(f"s_cmp_eq_u32 s{sLW}, 2\ns_cbranch_scc0 L_t3")
        L(f"s_and_b32 s3, s{sH}, 14\ns_mul_i32 s3, s3, {256*896}")
        touch(sO, "s3", 512*896); L.vm.pop()
        touch(sWS, "0", 0x20000); L.vm.pop()
        L.raw("L_t3:")
        L(f"s_cmp_eq_u32 s{sLW}, 3\ns_cbranch_scc0 L_t4")
        L(f"s_mul_i32 s3, s{sBG}, {128*1792}")
        touch(sOUT, "s3", 128*1792); L.vm.pop()
        L(f"s_lshl_b32 s3, s{sH}, 9")
        touch(sW, "s3", 447*8192+512); L.vm.pop()
        L.raw("L_t4:")
    classes = P["classes"]; ncls = len(classes)
    if ncls > 1:
        sel = {"bg": f"s_and_b32 s3, s{sBG}, {ncls-1}", "hh": f"s_and_b32 s3, s{sHH}, {ncls-1}", "br": f"s_mov_b32 s3, s{sBR}",
               "bgbr": f"s_and_b32 s3, s{sBG}, {ncls//2-1}\ns_lshl_b32 s3, s3, 1\ns_or_b32 s3, s3, s{sBR}",
               "hh1": f"s_lshr_b32 s3, s{sHH}, 1", "bghh": f"s_add_u32 s3, s{sBG}, s{sHH}\ns_and_b32 s3, s3, {ncls-1}"}[P["clsel"]]
        L(sel)
        for ci in range(1, ncls): L(f"s_cmp_eq_u32 s3, {ci}\ns_cbranch_scc1 L_cls{ci}")
    out.append(L.text()); vm0 = list(L.vm); nl = len(L.ins)
    for ci, cl in enumerate(classes):
        L = Stream(); L.vm = list(vm0)
        issueW, issueX, issueVR, writeV, issueK = mk(L)
        L.raw(f"L_cls{ci}:")
        ks = {int(k): v for k, v in cl.get("K", {}).items()}
        vs = {int(k): v for k, v in cl.get("VR", {}).items()}
        staged = set(x for v in vs.values() for x in v)
        reuse = cl.get("reuse", 0)
        first = cl.get("first", "W")
        def extras(k):
            for g in ks.get(k, []): issueK(g)
            for g in vs.get(k, []): issueVR(g)
        extras(-1)
        for k in range(NB):
            tags = {f"W{k}", f"X{k//2}"}
            if k == P["kbar"]: tags.add("K")
            if k == NB-1: tags |= {"P", "W29"}
            if P["trace"]:
                L(f"s_waitcnt lgkmcnt(0)\nv_writelane_b32 v200, s70, {k}\nv_writelane_b32 v201, s72, {k}\ns_memrealtime s[74:75]")
            L.wait_vm_tags(tags)
            if L.lds: L("s_waitcnt lgkmcnt(0)")
            if P["trace"]: L(f"s_waitcnt lgkmcnt(0)\nv_writelane_b32 v202, s74, {k}\ns_memrealtime s[74:75]")
            L("s_barrier")
            if P["trace"]: L(f"s_memrealtime s[70:71]\ns_memtime s[72:73]\ns_waitcnt lgkmcnt(0)\nv_writelane_b32 v203, s74, {k}")
            stamp(L, f"B{k}")
            def doX():
                if k >= 2 and k % 2 == 0 and k//2 + 1 < 15:
                    j = k//2 + 1
                    if j >= 7 and (j-7) in staged: writeV(j, j-7)
                    elif j >= 11 and reuse: writeV(j, j-11)
                    else: issueX(j)
            if first == "E": extras(k)
            if first == "X": doX()
            nw = k + D - 1
            if MERGE and D == 3 and k == 27: nw = 99
            if 4 <= nw < 30: issueW(nw)
            if MERGE and D == 3 and k == 26: issueW(29)
            if first != "X": doX()
            if first != "E": extras(k)
            if k == 6: L(f"s_waitcnt lgkmcnt(0)\ns_add_u32 s{sNONCE}, s{sNONCE}, 0x9E3779B9")
            if k == 14: L("s_barrier")
            if k == 24:
                L(f"s_xor_b32 s3, s2, 8\ns_lshl_b32 s96, s3, 7\ns_lshl_b32 s97, s{sLW}, 2\ns_add_u32 s96, s96, s97\ns_add_u32 s96, s96, {PFLAG}\nv_mov_b32 v41, 0")
                L(f"s_lshl_b32 s97, s3, 13\ns_lshl_b32 s3, s{sLW}, 11\ns_add_u32 s97, s97, s3\ns_add_u32 s97, s97, {PBUF}")
                L(f"buffer_load_dword v43, v41, s[{sWS}:{sWS+3}], s96 offen sc1", tag="PP")
            if k == 26:
                L(f"v_cmp_ne_u32 vcc, s{sNONCE}, v43\ns_cbranch_vccz L_pok{ci}\ns_mov_b32 s98, 0")
                L.raw(f"L_pspin{ci}:\ns_sleep 2\nbuffer_load_dword v43, v41, s[{sWS}:{sWS+3}], s96 offen sc1\ns_add_u32 s98, s98, 1\ns_cmp_gt_u32 s98, {SPIN}\ns_cbranch_scc1 L_pok{ci}\ns_waitcnt vmcnt(0)\nv_cmp_ne_u32 vcc, s{sNONCE}, v43\ns_cbranch_vccnz L_pspin{ci}\nL_pok{ci}:")
                L(f"s_lshl_b32 s3, s{sLW}, 11\ns_add_u32 m0, s3, {LP + 8192}")
                L(f"buffer_load_dwordx4 v1, s[{sWS}:{sWS+3}], s97 offen sc1 lds", tag="P")
                L(f"buffer_load_dwordx4 v1, s[{sWS}:{sWS+3}], s97 offen offset:1024 sc1 lds", tag="P")
        if ci < ncls-1: L("s_branch L_red")
        out.append(L.text()); nl += len(L.ins)
    L = Stream()
    L.raw("L_red:")
    L(f"s_lshl_b32 s3, s{sG2}, 3\ns_add_u32 s3, s3, s{sM2}\ns_lshl_b32 s96, s3, 7\ns_add_u32 s96, s96, {RFLAG}\ns_mul_i32 s97, s3, 57344\ns_add_u32 s97, s97, {MBOX}")
    L(f"s_lshl_b32 s3, s{sLW}, 10\ns_add_u32 s97, s97, s3\nv_and_b32 v41, 7, v2\nv_lshlrev_b32 v41, 2, v41")
    L(f"s_lshr_b32 s3, s{sM2}, 1\ns_lshl_b32 s92, s{sBG}, 2\ns_add_u32 s3, s3, s92\ns_mul_i32 s92, s3, {32*1792}\ns_mul_i32 s3, s{sBR}, 896\ns_add_u32 s92, s92, s3")
    L(f"s_and_b32 s3, s{sHH}, 1\ns_mul_i32 s3, s3, 448\ns_add_u32 s92, s92, s3\ns_and_b32 s3, s{sM2}, 1\ns_mul_i32 s3, s3, 224\ns_add_u32 s92, s92, s3\ns_lshl_b32 s3, s{sLW}, 5\ns_add_u32 s92, s92, s3")
    L(f"v_and_b32 v3, 15, v2\nv_mul_u32_u24 v3, 1792, v3\nv_lshrrev_b32 v4, 4, v2\nv_lshl_add_u32 v3, v4, 3, v3\ns_add_u32 s93, s92, {16*1792}")
    L(f"s_cmp_eq_u32 s{sLW}, 3\ns_cselect_b32 s3, 0x80000000, 0\nv_or_b32 v5, s3, v1\nv_add_u32 v5, 4096, v5\nv_or_b32 v6, s3, v3")
    L("s_mov_b32 s98, 0\ns_mov_b32 s12, 0")
    L.raw(f"L_rspin:\nbuffer_load_dword v43, v41, s[{sWS}:{sWS+3}], s96 offen sc1\ns_add_u32 s98, s98, 1\ns_cmp_gt_u32 s98, {SPIN}\ns_cbranch_scc1 L_rok\ns_waitcnt vmcnt(0)")
    L.raw(f"v_cmp_eq_u32 vcc, s{sNONCE}, v43\ns_nop 1\ns_andn2_b32 s13, vcc_lo, s12\ns_and_b32 s13, s13, 0xff\ns_cbranch_scc0 L_rspin\ns_or_b32 s12, s12, s13")
    for src in range(8):
        L.raw(f"s_bitcmp1_b32 s13, {src}\ns_cbranch_scc0 L_rs{src}\ns_add_u32 s99, s97, {7168*src}")
        L.raw(f"buffer_load_dwordx4 {vr(44+4*src)}, v1, s[{sWS}:{sWS+3}], s99 offen sc1\nbuffer_load_dwordx4 {vr(76+4*src)}, v5, s[{sWS}:{sWS+3}], s99 offen sc1\nL_rs{src}:")
    L.raw("s_cmp_lg_u32 s12, 0xff\ns_cbranch_scc1 L_rspin\nL_rok:")
    if P["trace"]: L(f"s_waitcnt lgkmcnt(0)\nv_writelane_b32 v200, s70, {NB}\nv_writelane_b32 v201, s72, {NB}\ns_memrealtime s[70:71]\ns_memtime s[72:73]")
    stamp(L, "E")
    L("s_waitcnt vmcnt(0)")
    def reduce(base, acc, coff, va):
        t0, t1 = acc + 8, acc + 9
        for src in range(8):
            for j in range(4):
                r = base + 4*src + j
                if src == 0: L(f"v_lshlrev_b32 v{acc+2*j}, 16, v{r}\nv_and_b32 v{acc+2*j+1}, 0xffff0000, v{r}")
                else: L(f"v_lshlrev_b32 v{t0}, 16, v{r}\nv_and_b32 v{t1}, 0xffff0000, v{r}\nv_pk_add_f32 {vr(acc+2*j,2)}, {vr(acc+2*j,2)}, {vr(t0,2)}")
        for j in range(4): L(f"v_cvt_pk_bf16_f32 v{acc+j}, v{acc+2*j}, v{acc+2*j+1}")
        L(f"buffer_store_dwordx2 {vr(acc,2)}, v{va}, s[{sOUT}:{sOUT+3}], s92 offen offset:{coff}")
        L(f"buffer_store_dwordx2 {vr(acc+2,2)}, v{va}, s[{sOUT}:{sOUT+3}], s93 offen offset:{coff}")
    reduce(44, 108, 0, 3); reduce(76, 120, 128, 6)
    L(f"s_add_u32 s3, s{sH}, s{sLW}\ns_cmp_lg_u32 s3, 0\ns_cbranch_scc1 L_fin")
    lane0_off(L, 4, 5)
    L(f"v_mov_b32 v5, s{sNONCE}\ns_lshl_b32 s3, s{sBR}, 3\ns_add_u32 s3, s3, s{sBG}\ns_lshl_b32 s3, s3, 7\nbuffer_store_dword v5, v4, s[{sWS}:{sWS+3}], s3 offen sc1")
    L.raw("L_fin:")
    if P["trace"]:
        L(f"s_waitcnt vmcnt(0) lgkmcnt(0)\nv_writelane_b32 v200, s70, {NB+1}\nv_writelane_b32 v201, s72, {NB+1}\ns_memrealtime s[70:71]\ns_memtime s[72:73]\ns_waitcnt lgkmcnt(0)\nv_writelane_b32 v200, s70, {NB+2}\nv_writelane_b32 v201, s72, {NB+2}")
        L(f"s_lshl_b32 s3, s2, 2\ns_add_u32 s3, s3, s{sLW}\ns_lshl_b32 s3, s3, 10\ns_add_u32 s3, s3, {0x1300000}\nbuffer_store_dwordx4 v[200:203], v1, s[{sWS}:{sWS+3}], s3 offen")
    if stamps:
        if "F" in stamps: L("s_waitcnt vmcnt(0)"); stamp(L, "F")
        if not enc: put_stamps(L, 8, 8)
    if enc and enc[0] == "l":
        L.raw(f"s_waitcnt vmcnt(0) lgkmcnt(0)\ns_add_u32 s72, s72, 3000\nL_padl:\ns_memrealtime s[74:75]\ns_waitcnt lgkmcnt(0)\ns_sub_u32 s76, s74, s72\ns_cmp_lt_i32 s76, 0\ns_cbranch_scc1 L_padl")
    if P["padto"]:
        L.raw(f"s_waitcnt vmcnt(0) lgkmcnt(0)\ns_add_u32 s70, s70, {P['padto']*100}\nL_pad:\ns_memrealtime s[72:73]\ns_waitcnt lgkmcnt(0)\ns_sub_u32 s74, s72, s70\ns_cmp_lt_i32 s74, 0\ns_cbranch_scc1 L_pad")
    L.raw("L_end:\ns_endpgm")
    out.append(L.text()); info["loader_instrs"] = nl + len(L.ins)
    body = "\n".join(out)
    txt = f"""{HEADER}; @launch grid=(256,1,1) block=(512,1,1) lds=163840
; produced by my generator script gen2.py; params: {json.dumps({k: P[k] for k in P if k != 'stamps'})}
.amdgcn_target "amdgcn-amd-amdhsa--gfx950"
.text
.globl {NAME}
.p2align 8
.type {NAME},@function
{NAME}:
{body}
.section .rodata,"a"
.p2align 6
.amdhsa_kernel {NAME}
  .amdhsa_next_free_vgpr 256
  .amdhsa_next_free_sgpr 102
  .amdhsa_accum_offset 256
  .amdhsa_group_segment_fixed_size 0
  .amdhsa_kernarg_size 104
  .amdhsa_user_sgpr_count 2
  .amdhsa_user_sgpr_kernarg_segment_ptr 1
  .amdhsa_system_sgpr_workgroup_id_x 1
.end_amdhsa_kernel
"""
    return txt, info

if __name__ == "__main__":
    kw = json.loads(sys.argv[2]) if len(sys.argv) > 2 else {}
    txt, info = gen(**kw)
    open(sys.argv[1], "w").write(txt)
    print(sys.argv[1], info, len(txt))
```

```python
import sys, json
from isa import Stream, I
NAME = "concat_heads__gqa_block_cached__mha_block_cached__near_ridge_kernel"
HEADER = open("concat_heads__gqa_block_cached__mha_block_cached__near_ridge.s.ref").read().split("; @launch")[0]

DEF = dict(D=4, rot1=4, rot2=4, pW="", pX="", pK="", pV="", pVB="", pO="", kbar=12,
           classes=[{"K": {3: [0, 1], 6: [2, 3]}, "VB": {17: [0], 19: [1]}}], clsel="bg", wsoff=0, stamps=0, prio=0, lprio=0, budget=2,
           padto=0, enc=None, noload=0, nomfma=0, lat=7, pflag=19, ppoll=21, pchk=23, xmap=0, tags=0, fa=None, slp=0, finlag=1, pace=2, npoll=1)
LW, LX, LK = 0, 65536, 98304
LP = LK + 49152
STA, STB = LK + 32768, LW + 32768
EPOCH, PFLAG, RFLAG, STAMP, PBUF, MBOX, WSSZ = 0, 0x1000, 0x40000, 0x20000, 0x100000, 0x400000, 0x1400000
SPIN = 200000
sWAVE, sBR, sHG, sBG, sHH, sH, sBST, sKVS = 30, 31, 32, 33, 34, 35, 36, 37
sW, sX, sK, sV, sO, sWS, sOUT = 40, 44, 48, 52, 56, 60, 64
sNONCE = 68
MF = "v_mfma_f32_16x16x32_bf16"
VBOFF = [32768, 49152, 16384, 0]
def vr(a, n=4): return f"v[{a}:{a+n-1}]"

def sched(st, mf, items, budget):
    heads = [0]*len(items); n = len(mf); sufs = []
    for ch in items:
        a = [0]*len(ch); b = [0]*len(ch); ms = mh = 10**9
        for j in range(len(ch)-1, -1, -1):
            ms = min(ms, ch[j][1]); mh = min(mh, ch[j][2]); a[j] = ms; b[j] = mh
        sufs.append((a, b))
    for p in range(-1, n):
        if p >= 0: st(mf[p])
        room = budget(p) if p >= 0 else 10**9
        while True:
            best = None
            for ci, ch in enumerate(items):
                h = heads[ci]
                if h < len(ch) and ch[h][0] <= p:
                    key = (0 if sufs[ci][1][h] <= p+1 else 1, sufs[ci][0][h])
                    if best is None or key < best[0]: best = (key, ci)
            if best is None: break
            key, ci = best
            r, sd, hd, x, c = items[ci][heads[ci]]
            if key[0] and room < c and p < n-1: break
            assert hd > p or p == n-1, ("missed hard deadline", p, hd, x)
            x() if callable(x) else st(x)
            room -= c; heads[ci] += 1
    for ci, ch in enumerate(items):
        assert heads[ci] == len(ch), ("unscheduled", ch[heads[ci]])

def gen(**kw):
    P = dict(DEF); P.update(kw)
    D, PD, LAT, TAGS = P["D"], 2, P["lat"], P["tags"]
    stamps = P["stamps"]; enc = P["enc"]
    if enc: stamps = {enc[1]: 1}
    NB = 30
    out = []
    c = Stream()
    c("s_cmp_ge_u32 s2, 256\ns_cbranch_scc1 L_end")
    if stamps or P["padto"]: c("s_memrealtime s[70:71]")
    c("s_load_dwordx16 s[4:19], s[0:1], 0\ns_load_dwordx8 s[20:27], s[0:1], 64\ns_load_dwordx2 s[28:29], s[0:1], 96")
    c(f"v_lshrrev_b32 v1, 6, v0\nv_and_b32 v2, 63, v0\nv_readfirstlane_b32 s{sWAVE}, v1")
    if P["xmap"] == 0: c(f"s_and_b32 s{sBR}, s2, 1\ns_bfe_u32 s{sHG}, s2, 0x20001")
    elif P["xmap"] == 1: c(f"s_bfe_u32 s{sBR}, s2, 0x10002\ns_xor_b32 s{sBR}, s{sBR}, 1\ns_and_b32 s{sHG}, s2, 3")
    elif P["xmap"] == 2: c(f"s_and_b32 s{sBR}, s2, 1\ns_xor_b32 s{sBR}, s{sBR}, 1\ns_bfe_u32 s{sHG}, s2, 0x20001")
    c(f"s_lshr_b32 s{sBG}, s2, 5\ns_bfe_u32 s{sHH}, s2, 0x20003\ns_lshl_b32 s{sH}, s{sHG}, 2\ns_add_u32 s{sH}, s{sH}, s{sHH}")
    c(f"s_lshl_b32 s{sBST}, 0x20000, s{sBR}\ns_sub_u32 s{sKVS}, 1, s{sBR}")
    c(f"s_cmp_ge_u32 s{sWAVE}, 4\ns_cbranch_scc1 L_loader")
    out.append(c.text())

    def ws_srd(s):
        s(f"s_add_u32 s{sWS}, s28, {P['wsoff']}\ns_addc_u32 s{sWS+1}, s29, 0\ns_and_b32 s{sWS+1}, s{sWS+1}, 0xffff\ns_mov_b32 s{sWS+2}, {WSSZ}\ns_mov_b32 s{sWS+3}, 0x20000")
    def load_nonce(s):
        s(f"s_lshl_b32 s3, s{sBR}, 3\ns_add_u32 s3, s3, s{sBG}\ns_lshl_b32 s3, s3, 7\ns_add_u32 s38, s{sWS}, s3\ns_addc_u32 s39, s{sWS+1}, 0")
        s(f"s_load_dword s{sNONCE}, s[38:39], {EPOCH}")
    def group_regs(s, sg, sm):
        s(f"s_lshl_b32 s{sg}, s{sBR}, 3\ns_add_u32 s{sg}, s{sg}, s{sBG}\ns_lshl_b32 s{sg}, s{sg}, 1\ns_and_b32 s3, s{sHH}, 1\ns_add_u32 s{sg}, s{sg}, s3")
        s(f"s_lshl_b32 s{sm}, s{sHG}, 1\ns_lshr_b32 s3, s{sHH}, 1\ns_add_u32 s{sm}, s{sm}, s3")
    def lane0_off(s, dst, tmp):
        s(f"v_mbcnt_lo_u32_b32 v{tmp}, -1, 0\nv_mbcnt_hi_u32_b32 v{tmp}, -1, v{tmp}\nv_min_u32 v{tmp}, 1, v{tmp}\nv_lshlrev_b32 v{dst}, 31, v{tmp}")
    def put_stamps(s, n, tmp):
        s("s_waitcnt lgkmcnt(0)")
        s(f"s_lshl_b32 s3, s2, 3\ns_add_u32 s3, s3, s{sWAVE}\ns_lshl_b32 s3, s3, 6\ns_add_u32 s3, s3, {STAMP}")
        lane0_off(s, tmp+4, tmp+5)
        for j in range(0, n, 2):
            for q in range(4): s(f"v_mov_b32 v{tmp+q}, s{70+2*j+q}")
            s(f"buffer_store_dwordx4 {vr(tmp)}, v{tmp+4}, s[{sWS}:{sWS+3}], s3 offen offset:{8*j}")
    def stamp(s, label):
        if stamps and label in stamps: s(f"s_memrealtime s[{70+2*stamps[label]}:{71+2*stamps[label]}]")
    def tag_calc(vtag, vt0, vl16):
        return [f"v_bfe_u32 v{vt0}, v{vl16}, 4, 2", f"v_lshlrev_b32 v{vt0}, 1, v{vt0}", f"v_lshrrev_b32_e64 v{vtag}, v{vt0}, s{sNONCE}",
                f"v_and_b32 v{vt0}, 1, v{vtag}", f"v_bfe_u32 v{vtag}, v{vtag}, 1, 1", f"v_lshl_or_b32 v{vtag}, v{vtag}, 16, v{vt0}"]

    s = Stream()
    vB0 = 3; aW = 8; aX = 16; AB = 20; BB = 36; F = 68; NAB = 3
    if P["prio"]: s(f"s_setprio {P['prio']}")
    sBP, sDH, sT5, sG, sM, sO0, sO1, sF0, sF1, sPB, sPF, sLP, sSX, sU1, sU2 = 4, 5, 6, 14, 15, 16, 17, 18, 19, 20, 21, 24, 25, 40, 41
    s(f"v_lshrrev_b32 v4, 4, v2\nv_bfe_u32 v5, v2, 2, 2\nv_and_b32 v6, 3, v2\nv_and_b32 v7, 15, v2")
    s(f"v_lshl_add_u32 v{vB0}, v4, 3, v5\nv_lshlrev_b32 v{vB0}, 9, v{vB0}\nv_lshl_add_u32 v{vB0}, v6, 3, v{vB0}\nv_lshl_add_u32 v{vB0}, v5, 5, v{vB0}")
    s(f"v_and_b32 v0, 1, v4\nv_lshl_add_u32 v{vB0}, v0, 7, v{vB0}")
    s(f"s_and_b32 s76, s{sWAVE}, 1\ns_lshr_b32 s77, s{sWAVE}, 1\ns_lshl_b32 s3, s77, 8")
    for T in range(8):
        s(f"s_add_u32 s78, s3, {T<<5}\nv_xor_b32 v{aW+T}, s78, v{vB0}")
    s(f"v_lshrrev_b32 v0, 1, v7\nv_xor_b32 v0, v0, v4\nv_lshlrev_b32 v0, 4, v0\nv_lshl_add_u32 v0, v7, 7, v0")
    s(f"s_lshl_b32 s78, s76, 13\ns_lshl_b32 s79, s77, 12\ns_add_u32 s78, s78, s79\ns_add_u32 s78, s78, {LX}")
    s(f"v_add_u32 v{aX}, s78, v0\nv_xor_b32 v{aX+1}, 64, v{aX}\nv_xor_b32 v{aX+2}, 0x1000, v{aX}\nv_xor_b32 v{aX+3}, 0x1000, v{aX+1}")
    s(f"v_lshrrev_b32 v0, 1, v4\nv_xor_b32 v0, v0, v7\nv_lshlrev_b32 v0, 4, v0\nv_lshl_add_u32 v0, v7, 9, v0\nv_and_b32 v1, 1, v4\nv_lshl_add_u32 v0, v1, 3, v0")
    s(f"s_lshl_b32 s78, s76, 15\ns_lshl_b32 s79, s77, 8\ns_add_u32 s78, s78, s79\ns_add_u32 s78, s78, {LK}\nv_add_u32 v1, s78, v0")
    s("s_waitcnt lgkmcnt(0)")
    s(f"s_mov_b32 s{sBP}, s76\ns_mov_b32 s{sDH}, s77\ns_mov_b32 s{sSX}, s78")
    ws_srd(s); load_nonce(s)
    s(f"s_and_b32 s23, s{sHH}, 1\ns_lshl_b32 s23, s23, 7\ns_lshl_b32 s{sU1}, s{sDH}, 7\ns_mul_i32 s{sU2}, s{sDH}, 96")
    for t in range(7):
        if t < 4: s(f"s_add_u32 s{sT5+t}, s{sU1}, {t<<5}")
        else: s(f"s_add_u32 s{sT5+t}, s{sU2}, {(t+4)<<5}")
        s(f"s_add_u32 s{sT5+t}, s{sT5+t}, s23")
        if t >= 5: s(f"s_cmp_ge_u32 s{sT5+t}, 512\ns_cselect_b32 s3, {14<<5}, 0\ns_sub_u32 s{sT5+t}, s{sT5+t}, s3")
    group_regs(s, sG, sM)
    s(f"s_lshl_b32 s22, s{sBP}, 2\ns_mul_i32 s23, s{sDH}, 3\ns_add_u32 s22, s22, s23\ns_xor_b32 s23, s22, 2\ns_lshl_b32 s3, s{sG}, 3\ns_add_u32 s22, s22, s3\ns_add_u32 s23, s23, s3")
    s(f"s_mul_i32 s3, s{sM}, 7168\ns_add_u32 s3, s3, {MBOX}\ns_mul_i32 s{sO0}, s22, 57344\ns_add_u32 s{sO0}, s{sO0}, s3\ns_mul_i32 s{sO1}, s23, 57344\ns_add_u32 s{sO1}, s{sO1}, s3")
    s(f"s_lshl_b32 s3, s{sG}, 3\ns_add_u32 s3, s3, s{sM}\ns_cmp_eq_u32 s22, s3\ns_cselect_b32 s{sO0}, 0x80000000, s{sO0}\ns_cmp_eq_u32 s23, s3\ns_cselect_b32 s{sO1}, 0x80000000, s{sO1}")
    s(f"s_add_u32 s{sO0}, s{sO0}, 4096\ns_add_u32 s{sO1}, s{sO1}, 4096\ns_lshl_b32 s42, s{sWAVE}, 13\ns_add_u32 s42, s42, {STA}")
    s(f"s_lshl_b32 s3, s{sM}, 7\ns_add_u32 s3, s3, {RFLAG}\ns_lshl_b32 s{sF0}, s22, 10\ns_add_u32 s{sF0}, s{sF0}, s3\ns_lshl_b32 s{sF1}, s23, 10\ns_add_u32 s{sF1}, s{sF1}, s3\ns_mov_b32 s27, 0xfffefffe")
    s(f"s_lshl_b32 s22, s{sBP}, 1\ns_add_u32 s22, s22, s{sDH}\ns_lshl_b32 s{sPB}, s2, 13\ns_lshl_b32 s23, s22, 11\ns_add_u32 s{sPB}, s{sPB}, s23\ns_add_u32 s{sPB}, s{sPB}, {PBUF}")
    s(f"s_lshl_b32 s{sPF}, s2, 7\ns_lshl_b32 s23, s22, 2\ns_add_u32 s{sPF}, s{sPF}, s23\ns_add_u32 s{sPF}, s{sPF}, {PFLAG}")
    s(f"s_lshl_b32 s{sLP}, s22, 11\ns_add_u32 s{sLP}, s{sLP}, {LP}\ns_mov_b32 s26, 0x3db8aa3b")

    accT = {0:128, 1:240, 2:144, 3:160, 4:176, 5:192, 6:208, 7:224}
    acc1 = lambda T, qt: accT[T] + 4*qt
    accN = lambda t, k4: 128 + 16*t + 4*k4
    NA = lambda l, t: F + 4*(l*7 + t)
    mf = []; items = []; stepstart = {}; tiles = []; kst = []
    def add_tile(i, t, kp, par, areg, off, first):
        tiles.append((i, t, len(mf), areg, off)); ab = AB + 4*((len(tiles)-1) % NAB)
        for k in range(4):
            if i < 14:
                a = acc1(t, k); mf.append(f"{MF} {vr(a)}, {vr(ab)}, {vr(BB+16*par+4*k)}, {'0' if first else vr(a)}")
            else:
                a = accN(t, k); mf.append(f"{MF} {vr(a)}, {vr(BB+16*par+4*k)}, {vr(ab)}, {'0' if first else vr(a)}")
    for i in range(14):
        stepstart[i] = len(mf); kst.append((i, i % 2, len(mf), ((i//2) % 2)*16384))
        for T in range(8): add_tile(i, T, 0, i % 2, aW+T, (i % 4)*16384, i == 0)
    S0 = len(mf); SK, SS = 240, 160
    def kfr(l, kt, sx):
        j = sx*4 + l*2 + kt
        return F + 4*j if j < 15 else 4
    for sx in range(4):
        for l in (1, 0):
            for kt in range(2):
                for q2 in range(2):
                    d = (SK, SS)[l] + 8*kt + 4*q2
                    mf.append(f"{MF} {vr(d)}, {vr(kfr(l,kt,sx))}, {vr(acc1(2*sx, 2*l+q2))}, {'0' if sx == 0 else vr(d)}")
    for i in range(14, 22):
        stepstart[i] = len(mf); kst.append((i, i % 2, len(mf), ((i//2) % 2)*16384))
        for t in range(7): add_tile(i, t, 0, i % 2, aW+t, (i % 4)*16384, i == 14)
    PRl1 = [32, 124, 4, 12]
    PR = lambda l, hd, q: 240 + 8*hd + 4*q if l == 0 else PRl1[2*hd+q]
    fin = {}; tdone = {}
    def add_final(l, t, d0, d1):
        fin[l, t] = (len(mf), d0, d1)
        mf.append(f"{MF} {vr(d0)}, {vr(NA(l,t))}, {vr(PR(l,0,0))}, 0")
        mf.append(f"{MF} {vr(d1)}, {vr(NA(l,t))}, {vr(PR(l,0,1))}, 0")
        mf.append(f"{MF} {vr(d0)}, {vr(accN(t,2*l))}, {vr(PR(l,1,0))}, {vr(d0)}")
        mf.append(f"{MF} {vr(d1)}, {vr(accN(t,2*l))}, {vr(PR(l,1,1))}, {vr(d1)}")
    def ft(t):
        add_final(0, t, accN(t,1), accN(t,3)); add_final(1, t, NA(0,t), accN(t,0))
    pend = [0, 1, 2, 3]; ntl = 0
    for i in range(22, 30):
        ps, s2 = (i-22)//4, (i-22) % 4
        tl = range(4) if ps == 0 else range(4, 7)
        stepstart[i] = len(mf)
        bt = lambda t, kp: add_tile(i, t, kp, kp, aW + (t % 4), (i % 4)*16384 + kp*8192, s2 == 0 and kp == 0)
        if i < 29:
            for kp in range(2):
                kst.append((i, kp, len(mf), VBOFF[s2]))
                for t in tl:
                    bt(t, kp)
                    if i == 25 and kp == 1: tdone[t] = len(mf)-1
                    if ps == 1:
                        ntl += 1
                        if pend and ntl >= 1 + P["finlag"] and (ntl - 1 - P["finlag"]) % 2 == 0: ft(pend.pop(0))
        else:
            kst.append((i, 0, len(mf), VBOFF[s2])); bt(4, 0); bt(5, 0)
            kst.append((i, 1, len(mf), VBOFF[s2])); bt(4, 1); tdone[4] = len(mf)-1; bt(5, 1); tdone[5] = len(mf)-1
            bt(6, 0); bt(6, 1); tdone[6] = len(mf)-1
            ft(4); ft(5); ft(6)
    assert not pend
    order = [(l, t) for t in range(7) for l in range(2)]
    NM = len(mf)
    gfirst = {}
    for gi, tl in enumerate(tiles): gfirst.setdefault(tl[0], gi)
    barpos = {0: -1}
    for i in range(1, NB): barpos[i] = tiles[gfirst[i]-PD][2] - 1
    staged_at = {}; staged_now = []
    def bar(label, pre=None):
        def f():
            if pre: pre()
            s("s_barrier"); stamp(s, label); staged_at[label] = list(staged_now)
        return f
    ev = []
    for k in range(NB):
        pre = (lambda: s("s_waitcnt lgkmcnt(0)")) if ((D == 4 and k > 0) or k >= 26) else None
        if k == 6: pre = lambda: s(f"s_waitcnt lgkmcnt(0)\ns_add_u32 s{sNONCE}, s{sNONCE}, 0x9E3779B9")
        ev.append((barpos[k], 0, barpos[k], barpos[k]+1, bar(f"B{k}", pre), 1))
    seen = set()
    for gi, (i, T, m0, areg, off) in enumerate(tiles):
        ab = AB + 4*(gi % NAB)
        pos = tiles[gi-PD][2] if gi >= PD else -1
        if gi >= NAB: pos = max(pos, tiles[gi-NAB][2] + 3)
        sd = m0 - LAT
        if i == 14: ev.append((pos, 1, sd, m0, f"v_xor_b32 v{areg}, s{sT5+T}, v{vB0}", 1))
        if i in (22, 26) and (i, T) not in seen:
            seen.add((i, T))
            if i == 22 and T == 0:
                ev.append((pos, 0.5, sd, m0, f"v_and_b32 v7, 0x1ff, v{vB0}\nv_lshrrev_b32 v{vB0}, 9, v{vB0}\nv_lshl_or_b32 v{vB0}, v{vB0}, 8, v7", 3))
            ev.append((pos, 1, sd, m0, f"s_add_u32 s3, s{(sU1, sU2)[i == 26]}, {(T % 4) << 5}\nv_xor_b32 v{areg}, s3, v{vB0}", 2))
        e2 = 2048 if i < 22 else 1024
        ev.append((pos, 2, sd, m0, f"ds_read_b64_tr_b16 {vr(ab,2)}, v{areg} offset:{LW+off}", 1))
        ev.append((pos+1 if pos >= 0 else -1, 2, sd, m0, f"ds_read_b64_tr_b16 {vr(ab+2,2)}, v{areg} offset:{LW+off+e2}", 1))
    for u, (i, kp, m0, off) in enumerate(kst):
        par = kp
        for q4 in range(4):
            if u == 0: pos = -1
            elif i >= 22 and kp == 1: pos = kst[u-1][2] + (0, 1, 2, 3)[q4]
            else: pos = barpos[i] + (2, 3, 4, 5)[q4]
            use = m0 + q4
            ev.append((pos, 3, use - LAT, use, f"ds_read_b128 {vr(BB+16*par+4*q4)}, v{aX+2*(q4//2)+kp} offset:{off + (q4 % 2)*2048}", 1))
    ev.sort(key=lambda e: (e[0], e[1]))
    items.append([(e[0], e[2], e[3], e[4], e[5]) for e in ev])
    ch = []; kb = barpos[P["kbar"]]
    for sx in range(4):
        for e in range(2):
            use = S0 + 8*sx
            ch.append((kb, use - LAT - 30, use, f"v_xor_b32 v0, {(4*sx+2*e) << 4}, v1", 1))
            for l in (1, 0):
                for kt in range(2):
                    ch.append((kb, use - LAT - 30, use, f"ds_read_b64 {vr(kfr(l,kt,sx)+2*e,2)}, v0 offset:{l*16384 + kt*8192}", 1))
    items.append(ch)
    cvt = lambda d, a: f"v_cvt_pk_bf16_f32 v{d}, v{a}, v{a+1}"
    for sx in range(4):
        ch = []
        rdy = stepstart[13] + 8*sx + 7 + (2 if sx < 3 else 3)
        for qt in (2, 3, 0, 1):
            a, b = acc1(2*sx, qt), acc1(2*sx+1, qt)
            dl = S0 + 8*sx + (0 if qt >= 2 else 4)
            if sx == 1: dl = S0
            ch += [(rdy, dl-1, dl, x, 1) for x in (cvt(a, a), cvt(a+1, a+2), cvt(a+2, b), cvt(a+3, b+2))]
        items.append(ch)
    ch = []; p14 = stepstart[14]; R = F; T0 = F + 16
    for x in ("v_lshrrev_b32 v0, 4, v2", "v_lshlrev_b32 v0, 9, v0", "v_and_b32 v1, 15, v2", "v_lshl_add_u32 v0, v1, 4, v0", f"v_add_u32 v0, s{sSX}, v0"):
        ch.append((S0+24, p14-2, p14, x, 1))
    for j in range(4):
        ch.append((S0+30, p14+2, p14+6, (lambda j=j: s(f"ds_write_b128 v0, {vr(SS+4*j)} offset:{2048*j}", tag="SW")), 1))
    bs = p14 + 10
    def bS():
        s.wait_lds_tag("SW"); s("s_barrier"); stamp(s, "BS")
    ch.append((p14+1, bs, bs+1, "v_xor_b32 v0, 0x100, v0", 1))
    ch.append((bs, bs, bs+1, bS, 2))
    dl = stepstart[P["pflag"]-1] + 8
    for j in range(4): ch.append((bs, bs+4, barpos[15], f"ds_read_b128 {vr(R+4*j)}, v0 offset:{2048*j}", 1))
    rd = bs + 12
    sm = [f"v_add_f32 v{SK+j}, v{SK+j}, v{R+j}" for j in range(16)]
    nadd = len(sm)
    sv = lambda q2: [SK + 8*kt + 4*q2 + r for kt in range(2) for r in range(4)]
    M = [T0, T0+1]; Tm = [T0+2, T0+3]; SU = [T0+4, T0+5]; PF = T0 + 8
    def both(f):
        for q2 in range(2): sm.append(f(q2))
    both(lambda q: f"v_max3_f32 v{M[q]}, v{sv(q)[0]}, v{sv(q)[1]}, v{sv(q)[2]}")
    both(lambda q: f"v_max3_f32 v{M[q]}, v{M[q]}, v{sv(q)[3]}, v{sv(q)[4]}")
    both(lambda q: f"v_max3_f32 v{M[q]}, v{M[q]}, v{sv(q)[5]}, v{sv(q)[6]}")
    both(lambda q: f"v_max_f32 v{M[q]}, v{M[q]}, v{sv(q)[7]}")
    for pl in ("v_permlane32_swap_b32", "v_permlane16_swap_b32"):
        both(lambda q: f"v_mov_b32 v{Tm[q]}, v{M[q]}"); both(lambda q: f"{pl} v{M[q]}, v{Tm[q]}"); both(lambda q: f"v_max_f32 v{M[q]}, v{M[q]}, v{Tm[q]}")
    both(lambda q: f"v_mul_f32 v{M[q]}, s26, v{M[q]}")
    for j in range(8): both(lambda q: f"v_fma_f32 v{sv(q)[j]}, v{sv(q)[j]}, s26, -v{M[q]}")
    for j in range(8): both(lambda q: f"v_exp_f32 v{sv(q)[j]}, v{sv(q)[j]}")
    both(lambda q: f"v_add_f32 v{SU[q]}, v{sv(q)[0]}, v{sv(q)[1]}")
    for j in range(2, 8): both(lambda q: f"v_add_f32 v{SU[q]}, v{SU[q]}, v{sv(q)[j]}")
    for pl in ("v_permlane32_swap_b32", "v_permlane16_swap_b32"):
        both(lambda q: f"v_mov_b32 v{Tm[q]}, v{SU[q]}"); both(lambda q: f"{pl} v{SU[q]}, v{Tm[q]}"); both(lambda q: f"v_add_f32 v{SU[q]}, v{SU[q]}, v{Tm[q]}")
    both(lambda q: f"v_rcp_f32 v{SU[q]}, v{SU[q]}")
    for j in range(8): both(lambda q: f"v_mul_f32 v{sv(q)[j]}, v{sv(q)[j]}, v{SU[q]}")
    for j in range(4): both(lambda q: cvt(PF+4*q+j, sv(q)[2*j]))
    sm += ["v_lshlrev_b32 v1, 4, v2", f"v_add_u32 v0, s{sLP}, v1"]
    for q in range(2):
        sm.append(f"ds_write_b128 v0, {vr(PF+4*q)} offset:{1024*q}")
        sm.append(f"buffer_store_dwordx4 {vr(PF+4*q)}, v1, s[{sWS}:{sWS+3}], s{sPB} offen offset:{1024*q} sc1")
    sm += ["v_min_u32 v2, 1, v2", "v_lshlrev_b32 v2, 31, v2", f"v_mov_b32 v15, s{sNONCE}"]
    for n, x in enumerate(sm):
        hd = barpos[16] if n < nadd else dl
        ch.append((rd, hd, hd, x, 2 if x.startswith("v_exp") or x.startswith("v_rcp") else 1))
    fp = stepstart[P["pflag"]] + 8
    ch.append((fp, fp+2, fp+8, f"s_waitcnt vmcnt(0)\nbuffer_store_dword v15, v2, s[{sWS}:{sWS+3}], s{sPF} offen sc1", 2))
    fl = [f"v_mov_b32 v5, s{sF1}", f"v_mov_b32 v2, 0x80000000", f"v_cmp_eq_u32 vcc, 16, v1", f"v_cndmask_b32 v2, v2, v5, vcc", f"v_mov_b32 v5, s{sF0}", f"v_cmp_eq_u32 vcc, 0, v1", f"v_cndmask_b32 v2, v2, v5, vcc"]
    for x in fl: ch.append((fp+12, stepstart[24], stepstart[24], x, 1))
    items.append(ch)
    ch = []
    for t in range(7):
        rdy = stepstart[21] + 4*t + 3 + 3
        dl = stepstart[22] + 4*t if t < 4 else stepstart[23]
        for l in range(2):
            a, b, d = accN(t, 2*l), accN(t, 2*l+1), NA(l, t)
            ch += [(rdy, dl-1, dl, x, 1) for x in (cvt(d, a), cvt(d+1, a+2), cvt(d+2, b), cvt(d+3, b+2))]
    items.append(ch)
    ch = []
    for l in range(2):
        use = fin[l, 0][0]
        if l: ch.append((barpos[25], use - LAT - 6, use, "v_xor_b32 v12, 0x800, v0", 1))
        for hd in range(2):
            for q in range(2):
                ch.append((barpos[25], use - LAT - 6, use, f"ds_read_b128 {vr(PR(l,hd,q))}, v{(0,12)[l]} offset:{hd*8192 + q*1024}", 1))
    items.append(ch)
    ch = []
    for (l, t) in order:
        rdy = tdone[t] + 3; a, b = accN(t, 2*l), accN(t, 2*l+1); dl = fin[0, t][0]
        ch += [(min(rdy, dl-1), dl-1, dl, x, 1) for x in (cvt(a, a), cvt(a+1, a+2), cvt(a+2, b), cvt(a+3, b+2))]
    items.append(ch)
    ch = []
    r0 = fin[1, 0][0]
    ch.append((r0, r0+2, NM, "v_add_u32 v0, s42, v1", 1))
    vTAG = 3
    r1 = stepstart[27]
    for gi, (l, t) in enumerate(order):
        m0, d0, d1 = fin[l, t]
        rdy = min(m0 + 3 + 3, NM-1); sdl = min(m0 + 12, NM)
        if gi == 8 and TAGS:
            for x in tag_calc(vTAG, 11, 1): ch.append((r1, r1+8, NM, x, 1))
        if gi == 8: ch.append((r1, r1+8, NM, f"v_mov_b32 v11, s{sNONCE}\nv_subrev_u32 v0, {STA - STB}, v0", 2))
        ch += [(rdy, sdl, NM, x, 1) for x in (cvt(d0, d0), cvt(d0+1, d0+2), cvt(d0+2, d1), cvt(d0+3, d1+2))]
        if t < 4:
            def f(l=l, t=t, d0=d0):
                s(f"ds_write_b128 v0, {vr(d0)} offset:{(l*4 + t)*1024}"); staged_now.append((l, t))
            ch.append((rdy, sdl, barpos[29], f, 1))
        else:
            if TAGS: ch += [(rdy, sdl, NM, f"v_bitop3_b32 v{d0+j}, v{d0+j}, s27, v{vTAG} bitop3:{('0xe2', '0xd1')[j%2]}", 1) for j in range(4)]
            ch.append((rdy, sdl, NM, f"buffer_store_dwordx4 {vr(d0)}, v1, s[{sWS}:{sWS+3}], s{(sO0, sO1)[l]} offen offset:{1024*(t-4)} sc1", 1))
            ch.append((rdy, sdl, NM, f"ds_write_b128 v0, {vr(d0)} offset:{(l*4 + t-4)*1024}", 1))
    items.append(ch)
    if P["nomfma"]:
        mf = ["s_nop 0"]*len(mf); items[0] = [e for e in items[0] if callable(e[3])]
    firsts = set(x[2] for x in tiles)
    sched(s, mf, items, lambda p: P["budget"] - (1 if (p+1) in firsts else 0))
    stamp(s, "E")
    if TAGS != 1: s("s_waitcnt vmcnt(0)")
    s(f"buffer_store_dword v11, v2, s[{sWS}:{sWS+3}], 0 offen offset:4 sc1")
    stamp(s, "A")
    s("s_waitcnt lgkmcnt(0)\ns_barrier")
    if stamps:
        stamp(s, "F")
        if not enc: put_stamps(s, 8, 8)
    if enc and enc[0] == "c":
        s.raw(f"s_waitcnt vmcnt(0) lgkmcnt(0)\ns_add_u32 s72, s72, 3000\nL_padc:\ns_memrealtime s[74:75]\ns_waitcnt lgkmcnt(0)\ns_sub_u32 s76, s74, s72\ns_cmp_lt_i32 s76, 0\ns_cbranch_scc1 L_padc")
    s("s_endpgm")
    out.append(s.text())
    info = dict(compute_instrs=len(s.ins), nops=s.nnop, waits=s.nwait, mfma=NM)

    L = Stream()
    L("L_loader:")
    if P["lprio"]: L(f"s_setprio {P['lprio']}")
    sLW = 69
    L(f"s_sub_u32 s{sLW}, s{sWAVE}, 4")
    vWq, vWo, vXx, vXv, vKk, vW1, vW2, vST = 8, 12, 16, 20, 24, 32, 36, 128
    L(f"v_lshrrev_b32 v3, 5, v2\nv_and_b32 v4, 31, v2\ns_and_b32 s3, s{sLW}, 1\ns_lshl_b32 s3, s3, 3\ns_lshl_b32 s38, s{sLW}, 3")
    for p in range(4):
        L(f"v_add_u32 v5, {(2*p)&3}, v3\nv_lshlrev_b32 v5, 1, v5\nv_or_b32 v5, s3, v5\nv_xor_b32 v5, v5, v4\nv_lshlrev_b32 v5, 4, v5")
        L(f"v_add_u32 v6, {2*p}, v3\nv_add_u32 v6, s38, v6\nv_lshl_add_u32 v{vWq+p}, v6, 13, v5\nv_mul_u32_u24 v6, 896, v6\nv_add_u32 v{vWo+p}, v6, v5")
        if p: L(f"v_subrev_u32 v{vWq+p}, {1024*p}, v{vWq+p}\nv_subrev_u32 v{vWo+p}, {1024*p}, v{vWo+p}")
    L(f"v_lshrrev_b32 v3, 3, v2\nv_and_b32 v4, 7, v2\nv_lshrrev_b32 v7, 4, v2\nv_xor_b32 v4, v4, v7\ns_lshl_b32 s38, s{sLW}, 5")
    for p in range(4):
        L(f"v_xor_b32 v5, {(p&1)<<2}, v4\nv_lshlrev_b32 v5, 4, v5\nv_add_u32 v6, {8*p}, v3\nv_lshl_add_u32 v{vXv+p}, v6, 9, v5")
        L(f"v_add_u32 v6, s38, v6\nv_mul_u32_u24 v6, 896, v6\nv_add_u32 v{vXx+p}, v6, v5")
        if p: L(f"v_subrev_u32 v{vXv+p}, {1024*p}, v{vXv+p}\nv_subrev_u32 v{vXx+p}, {1024*p}, v{vXx+p}")
    sJ1, sWo_, sXo_, sKo, sKo2, sKm, sM0W, sM0X, sJW, sJX, sWb, sXb, sJ2, sVa, sVb = 93, 4, 5, 6, 7, 8, 86, 87, 88, 89, 90, 91, 92, 9, 10
    L(f"s_lshl_b32 s{sM0W}, s{sLW}, 12\ns_add_u32 s{sM0X}, s{sM0W}, {LX}")
    r1 = P["rot1"]
    if r1 == 7:
        L(f"s_lshl_b32 s3, s{sHH}, 1\ns_add_u32 s{sJ1}, s3, s{sBG}")
        for _ in range(2): L(f"s_cmp_ge_u32 s{sJ1}, 7\ns_cselect_b32 s3, 7, 0\ns_sub_u32 s{sJ1}, s{sJ1}, s3")
    elif r1 == 4: L(f"s_add_u32 s3, s{sHH}, s{sBG}\ns_and_b32 s3, s3, 3\ns_lshl_b32 s{sJ1}, s3, 1")
    elif r1 == 2: L(f"s_xor_b32 s3, s{sHH}, s{sBG}\ns_and_b32 s3, s3, 1\ns_lshl_b32 s{sJ1}, s3, 2")
    else: L(f"s_mov_b32 s{sJ1}, 0")
    r2 = P["rot2"]
    if r2 == 4: L(f"s_and_b32 s{sJ2}, s{sBG}, 3")
    elif r2 == 2: L(f"s_and_b32 s{sJ2}, s{sBG}, 1\ns_lshl_b32 s{sJ2}, s{sJ2}, 1")
    else: L(f"s_mov_b32 s{sJ2}, 0")
    L(f"s_mov_b32 s{sJW}, s{sJ1}\ns_mov_b32 s{sJX}, s{sJ1}\ns_lshl_b32 s{sWb}, s{sH}, 9\ns_mul_i32 s{sXb}, s{sBG}, {128*896}")
    L("s_waitcnt lgkmcnt(0)")
    L(f"s_cmp_eq_u32 s{sBR}, 0")
    for (dst, i) in ((sW,3),(sX,0),(sK,1),(sV,2),(sO,4)):
        L(f"s_cselect_b32 s{dst}, s{4+2*i}, s{14+2*i}\ns_cselect_b32 s{dst+1}, s{5+2*i}, s{15+2*i}")
    for dst, size in ((sW,3670016),(sX,917504)):
        L(f"s_and_b32 s{dst+1}, s{dst+1}, 0xffff\ns_mov_b32 s{dst+2}, {size}\ns_mov_b32 s{dst+3}, 0x20000")
    def mk(L):
        def dma4(vbase, srd, soff, m0expr, pol, tag):
            if P["noload"] and tag not in ("W0","W1","W2","W3","X0","X1","K"): return
            L(m0expr)
            for p in range(4):
                L(f"buffer_load_dwordx4 v{vbase+p}, s[{srd}:{srd+3}], s{soff} offen offset:{1024*p} {pol} lds".replace("  ", " "), tag=tag)
        def issueW(i):
            m0 = f"s_add_u32 m0, s{sM0W}, {LW + (i%4)*16384}"
            if i < 14:
                if i % 2 == 0:
                    L(f"s_lshl_b32 s{sWo_}, s{sJW}, 19\ns_add_u32 s{sWo_}, s{sWo_}, s{sWb}\ns_add_u32 s{sJW}, s{sJW}, 1\ns_cmp_eq_u32 s{sJW}, 7\ns_cselect_b32 s{sJW}, 0, s{sJW}")
                else: L(f"s_add_u32 s{sWo_}, s{sWo_}, {32*8192}")
                dma4(vWq, sW, sWo_, m0, P["pW"], f"W{i}")
            elif i < 22:
                k = i - 14
                if k == 0:
                    L(f"s_mul_i32 s{sWb}, s{sH}, {256*896}\ns_and_b32 s3, s{sHH}, 1\ns_mul_i32 s3, s3, 384\ns_add_u32 s{sWb}, s{sWb}, s3")
                if k % 2 == 0:
                    L(f"s_add_u32 s3, s{sJ2}, {k//2}\ns_and_b32 s3, s3, 3\ns_mul_i32 s{sWo_}, s3, {64*896}\ns_add_u32 s{sWo_}, s{sWo_}, s{sWb}")
                else: L(f"s_add_u32 s{sWo_}, s{sWo_}, {32*896}")
                dma4(vWo, sO, sWo_, m0, P["pO"], f"W{i}")
            else:
                k = i - 22
                if k == 0: L(f"s_xor_b32 s3, s{sH}, 1\ns_mul_i32 s{sWb}, s3, {256*896}")
                L(f"s_add_u32 s3, s{sJ2}, {k%4}\ns_and_b32 s3, s3, 3\ns_mul_i32 s{sWo_}, s3, {64*896}\ns_add_u32 s{sWo_}, s{sWo_}, s{sWb}")
                dma4((vW1, vW2)[k//4], sO, sWo_, m0, P["pO"], f"W{i}")
        def voff(k):
            L(f"s_add_u32 s3, s{sJ2}, {k%4}\ns_and_b32 s3, s3, 3\ns_lshl_b32 s3, s3, 7\ns_add_u32 s{sXo_}, s3, s{(sVa, sVb)[k//4]}")
        def issueX(j):
            m0 = f"s_add_u32 m0, s{sM0X}, {(j%2)*16384 if j < 11 else VBOFF[j-11]}"
            if j < 7:
                L(f"s_lshl_b32 s{sXo_}, s{sJX}, 7\ns_add_u32 s{sXo_}, s{sXo_}, s{sXb}\ns_add_u32 s{sJX}, s{sJX}, 1\ns_cmp_eq_u32 s{sJX}, 7\ns_cselect_b32 s{sJX}, 0, s{sJX}")
                dma4(vXx, sX, sXo_, m0, P["pX"], f"X{j}")
            else:
                voff(j-7); dma4(vXv, sV, sXo_, m0, P["pV"] if j < 11 else P["pVB"], f"X{j}")
        def issueVR(k):
            voff(k)
            for p in range(4):
                L(f"buffer_load_dwordx4 {vr(vST+16*k+4*p)}, v{vXv+p}, s[{sV}:{sV+3}], s{sXo_} offen offset:{1024*p} {P['pV'] if k < 4 else P['pVB']}".rstrip(), tag=f"VR{k}")
        def writeV(j, k):
            vv, off = (42, (j%2)*16384) if j < 11 else (42, VBOFF[j-11])
            for p in range(4): L(f"ds_write_b128 v{vv}, {vr(vST+16*k+4*p)} offset:{off + 1024*p}")
        def issueK(g):
            dma4(vKk + 4*(g%2), sK, sKo if g < 2 else sKo2, f"s_add_u32 m0, s{sKm}, {4096*g}", P["pK"], "K")
        return issueW, issueX, issueVR, writeV, issueK
    issueW, issueX, issueVR, writeV, issueK = mk(L)
    issueW(0); issueX(0); issueW(1); issueW(2); issueX(1); issueW(3)
    L(f"s_lshl_b32 s3, 0x400000, s{sBR}")
    for dst in (sK, sV): L(f"s_and_b32 s{dst+1}, s{dst+1}, 0xffff\ns_mov_b32 s{dst+2}, s3\ns_mov_b32 s{dst+3}, 0x20000")
    L(f"s_and_b32 s{sO+1}, s{sO+1}, 0xffff\ns_mov_b32 s{sO+2}, 3670016\ns_mov_b32 s{sO+3}, 0x20000")
    L(f"s_mov_b32 s{sOUT}, s24\ns_and_b32 s{sOUT+1}, s25, 0xffff\ns_mov_b32 s{sOUT+2}, {32*32*896*2}\ns_mov_b32 s{sOUT+3}, 0x20000")
    ws_srd(L); load_nonce(L)
    L(f"v_lshrrev_b32 v3, 5, v2\nv_and_b32 v4, 31, v2\nv_bfe_u32 v7, v2, 4, 1\nv_xor_b32 v7, s{sLW}, v7\nv_mul_lo_u32 v7, v7, s{sBST}")
    for p in range(8):
        L(f"v_add_u32 v6, {2*p}, v3\nv_xor_b32 v5, v6, v4\nv_lshlrev_b32 v5, 4, v5\nv_lshl_add_u32 v5, v6, 9, v5\nv_add_u32 v{vKk+p}, v5, v7")
        if p % 4: L(f"v_subrev_u32 v{vKk+p}, {1024*(p%4)}, v{vKk+p}")
    L(f"v_lshrrev_b32 v3, 4, v2\nv_and_b32 v4, 15, v2\nv_lshlrev_b32 v7, 1, v3\nv_xor_b32 v4, v4, v7\ns_lshl_b32 s38, s{sLW}, 4\ns_and_b32 s11, s{sHH}, 1\ns_lshl_b32 s12, s11, 9\ns_add_u32 s13, s12, 256\ns_mul_i32 s14, s11, 512")
    for p in range(4):
        L(f"v_xor_b32 v5, {(p>>1)<<3}, v4\nv_add_u32 v6, {4*p}, v3\nv_add_u32 v6, s38, v6\nv_mul_u32_u24 v6, 896, v6\nv_subrev_u32 v6, {1024*p}, v6")
        L(f"v_lshl_add_u32 v{vW1+p}, v5, 4, v6\nv_add_u32 v{vW2+p}, s13, v{vW1+p}\nv_add_u32 v{vW1+p}, s12, v{vW1+p}")
        L(f"v_xor_b32 v7, 12, v5\nv_lshl_add_u32 v7, v7, 4, v6\nv_add_u32 v7, 384, v7\nv_lshrrev_b32 v5, 3, v5\nv_and_b32 v5, s11, v5\nv_cmp_eq_u32 vcc, 1, v5\nv_cndmask_b32 v{vW2+p}, v{vW2+p}, v7, vcc")
    L(f"s_lshr_b32 s3, s{sH}, s{sKVS}\ns_lshl_b32 s3, s3, 14\ns_lshl_b32 s{sKo}, s{sBG}, 2\ns_mul_i32 s{sKo}, s{sKo}, s{sBST}\ns_add_u32 s{sKo}, s{sKo}, s3\ns_add_u32 s{sKo2}, s{sKo}, 8192")
    L(f"s_mul_i32 s11, s{sLW}, s{sBST}\ns_add_u32 s{sVa}, s{sKo}, s11\ns_lshl_b32 s3, s{sBR}, 14\ns_xor_b32 s{sVb}, s{sVa}, s3")
    L(f"s_lshl_b32 s{sKm}, s{sLW}, 14\ns_add_u32 s{sKm}, s{sKm}, {LK}")
    sG2, sM2 = 94, 95
    group_regs(L, sG2, sM2)
    L(f"v_lshlrev_b32 v1, 4, v2\nv_add_u32 v42, s{sM0X}, v1")
    sS0, sS1 = 100, 101
    L(f"s_and_b32 s11, s{sLW}, 1\ns_lshl_b32 s11, s11, 2\ns_lshr_b32 s12, s{sLW}, 1\ns_mul_i32 s12, s12, 3\ns_add_u32 s11, s11, s12\ns_xor_b32 s12, s11, 2\ns_lshl_b32 s3, s{sG2}, 3\ns_add_u32 s13, s11, s3\ns_add_u32 s14, s12, s3")
    L(f"s_mul_i32 s3, s{sM2}, 7168\ns_add_u32 s3, s3, {MBOX}\ns_mul_i32 s{sS0}, s13, 57344\ns_add_u32 s{sS0}, s{sS0}, s3\ns_mul_i32 s{sS1}, s14, 57344\ns_add_u32 s{sS1}, s{sS1}, s3")
    L(f"s_cmp_eq_u32 s11, s{sM2}\ns_cselect_b32 s{sS0}, 0x80000000, s{sS0}\ns_cmp_eq_u32 s12, s{sM2}\ns_cselect_b32 s{sS1}, 0x80000000, s{sS1}")
    L(f"s_lshl_b32 s3, s{sM2}, 7\ns_add_u32 s3, s3, {RFLAG}\ns_lshl_b32 s13, s13, 10\ns_add_u32 s13, s13, s3\ns_lshl_b32 s14, s14, 10\ns_add_u32 s14, s14, s3")
    L(f"v_mov_b32 v5, s14\nv_mov_b32 v40, 0x80000000\nv_cmp_eq_u32 vcc, 1, v2\nv_cndmask_b32 v40, v40, v5, vcc\nv_mov_b32 v5, s13\nv_cmp_eq_u32 vcc, 0, v2\nv_cndmask_b32 v40, v40, v5, vcc")
    L(f"s_lshl_b32 s3, s{sLW}, 13\ns_add_u32 s3, s3, {STA}\nv_add_u32 v44, s3, v1")
    classes = P["classes"]; ncls = len(classes)
    if ncls > 1:
        L({"bg": f"s_and_b32 s3, s{sBG}, {ncls-1}", "hh": f"s_and_b32 s3, s{sHH}, {ncls-1}", "br": f"s_mov_b32 s3, s{sBR}"}[P["clsel"]])
        for ci in range(1, ncls): L(f"s_cmp_eq_u32 s3, {ci}\ns_cbranch_scc1 L_cls{ci}")
    out.append(L.text()); vm0 = list(L.vm); nl = len(L.ins)
    for ci, cl in enumerate(classes):
        L = Stream(); L.vm = list(vm0)
        issueW, issueX, issueVR, writeV, issueK = mk(L)
        L.raw(f"L_cls{ci}:")
        ks = {int(k): v for k, v in cl.get("K", {}).items()}
        vs = {int(k): v for k, v in cl.get("VR", {}).items()}
        vb = {int(k): v for k, v in cl.get("VB", {}).items()}
        staged = set(x for v in vs.values() for x in v)
        reuse = cl.get("reuse", 0)
        def putX(j):
            if j >= 7 and (j-7) in staged: writeV(j, j-7)
            elif j >= 11 and reuse: writeV(j, j-11)
            else: issueX(j)
        def extras(k):
            for g in ks.get(k, []): issueK(g)
            for g in vs.get(k, []): issueVR(g)
            for g in vb.get(k, []):
                assert k >= 16; putX(11+g)
        extras(-1)
        sent = []; read = []
        def stage_reads(k):
            for (l, t) in staged_at[f"B{k}"]:
                if (l, t) not in read:
                    L(f"ds_read_b128 {vr(96 + 4*(l*4+t))}, v44 offset:{(l*4+t)*1024}"); read.append((l, t))
        def stage_store(n):
            for (l, t) in [x for x in read if x not in sent][:n]:
                L(f"buffer_store_dwordx4 {vr(96 + 4*(l*4+t))}, v1, s[{sWS}:{sWS+3}], s{(sS0, sS1)[l]} offen offset:{1024*t} sc1", tag="SA"); sent.append((l, t))
        for k in range(NB):
            tags = {f"W{k}", f"X{k//2}" if k < 22 else f"X{11 + (k-22) % 4}"}
            if k == P["kbar"]: tags.add("K")
            if k == 25: tags.add("P")
            L.wait_vm_tags(tags)
            if L.lds and k < 26: L("s_waitcnt lgkmcnt(0)")
            L("s_barrier"); stamp(L, f"B{k}")
            if k >= 27:
                stage_reads(k); stage_store(P["pace"])
            nw = k + D - 1
            if 4 <= nw < 30: issueW(nw)
            if 2 <= k <= 18 and k % 2 == 0: putX(k//2 + 1)
            if k == 20: putX(13)
            if k == 22: putX(14)
            extras(k)
            if k == 6: L(f"s_waitcnt lgkmcnt(0)\ns_add_u32 s{sNONCE}, s{sNONCE}, 0x9E3779B9")
            if k == 14: L("s_barrier")
            if k == P["ppoll"]:
                L(f"s_xor_b32 s3, s2, 8\ns_lshl_b32 s96, s3, 7\ns_lshl_b32 s97, s{sLW}, 2\ns_add_u32 s96, s96, s97\ns_add_u32 s96, s96, {PFLAG}\nv_mov_b32 v41, 0")
                L(f"s_lshl_b32 s97, s3, 13\ns_lshl_b32 s3, s{sLW}, 11\ns_add_u32 s97, s97, s3\ns_add_u32 s97, s97, {PBUF}")
                L(f"buffer_load_dword v43, v41, s[{sWS}:{sWS+3}], s96 offen sc1", tag="PP")
            if k == P["pchk"]:
                L(f"v_cmp_ne_u32 vcc, s{sNONCE}, v43\ns_cbranch_vccz L_pok{ci}\ns_mov_b32 s98, 0")
                L.raw(f"L_pspin{ci}:\nbuffer_load_dword v43, v41, s[{sWS}:{sWS+3}], s96 offen sc1\ns_add_u32 s98, s98, 1\ns_cmp_gt_u32 s98, {SPIN}\ns_cbranch_scc1 L_pok{ci}\ns_waitcnt vmcnt(0)\nv_cmp_ne_u32 vcc, s{sNONCE}, v43\ns_cbranch_vccnz L_pspin{ci}\nL_pok{ci}:")
                L(f"s_lshl_b32 s3, s{sLW}, 11\ns_add_u32 m0, s3, {LP + 8192}")
                L(f"buffer_load_dwordx4 v1, s[{sWS}:{sWS+3}], s97 offen sc1 lds", tag="P")
                L(f"buffer_load_dwordx4 v1, s[{sWS}:{sWS+3}], s97 offen offset:1024 sc1 lds", tag="P")
        assert len(read) == 8
        while len(sent) < 8:
            L(f"s_waitcnt vmcnt({P['pace']-1})"); stage_store(1)
        L(f"v_mov_b32 v5, s{sNONCE}\ns_waitcnt vmcnt(0)\nbuffer_store_dword v5, v40, s[{sWS}:{sWS+3}], 0 offen sc1")
        stamp(L, "A")
        if ci < ncls-1: L("s_branch L_red")
        out.append(L.text()); nl += len(L.ins)
    L = Stream()
    L.raw("L_red:")
    sMB, sOA, sOB, sPend, sIt, sTm, sOC = 96, 92, 93, 12, 98, 99, 13
    L(f"s_lshl_b32 s3, s{sG2}, 3\ns_add_u32 s3, s3, s{sM2}\ns_lshl_b32 s97, s3, 10\ns_add_u32 s97, s97, {RFLAG}\ns_mul_i32 s{sMB}, s3, 57344\ns_add_u32 s{sMB}, s{sMB}, {MBOX}\ns_lshl_b32 s3, s{sLW}, 10\ns_add_u32 s{sMB}, s{sMB}, s3")
    L(f"s_lshr_b32 s3, s{sM2}, 1\ns_lshl_b32 s{sOA}, s{sBG}, 2\ns_add_u32 s3, s3, s{sOA}\ns_mul_i32 s{sOA}, s3, {32*1792}\ns_mul_i32 s3, s{sBR}, 896\ns_add_u32 s{sOA}, s{sOA}, s3")
    L(f"s_and_b32 s14, s{sHH}, 1\ns_lshl_b32 s14, s14, 9\ns_and_b32 s15, s{sM2}, 1\ns_mul_i32 s16, s15, 96\ns_lshl_b32 s15, s15, 7\ns_lshl_b32 s3, s{sLW}, 5\ns_add_u32 s14, s14, s3")
    L(f"s_add_u32 s16, s16, s14\ns_add_u32 s16, s16, 256\ns_cmp_ge_u32 s16, 896\ns_cselect_b32 s3, 448, 0\ns_sub_u32 s16, s16, s3\ns_add_u32 s{sOC}, s{sOA}, s16")
    L(f"s_add_u32 s15, s15, s14\ns_add_u32 s{sOA}, s{sOA}, s15\ns_add_u32 s{sOB}, s{sOA}, {16*1792}")
    if TAGS:
        for x in tag_calc(3, 4, 1): L(x)
    L(f"v_bfe_u32 v5, v1, 4, 4\nv_mul_u32_u24 v5, 1792, v5\nv_lshrrev_b32 v4, 8, v1\nv_lshl_add_u32 v5, v4, 3, v5\nv_and_b32 v6, 7, v2\nv_lshlrev_b32 v6, 7, v6")
    L(f"s_lshr_b32 s3, s{sM2}, 2\ns_and_b32 s14, s{sM2}, 1\ns_lshl_b32 s15, s14, 1\ns_add_u32 s3, s3, s15\ns_lshl_b32 s3, s3, 1\ns_lshr_b32 s15, s{sM2}, 1\ns_xor_b32 s15, s15, s14\ns_and_b32 s15, s15, 1\ns_add_u32 s3, s3, s15")
    L(f"s_lshl_b32 s3, s3, 12\ns_lshl_b32 s15, s{sLW}, 10\ns_add_u32 s3, s3, s15\ns_add_u32 s3, s3, {STB}\nv_add_u32 v7, s3, v1\nv_add_u32 v4, {STA - STB}, v7")
    def consume(s, lab, base, word):
        vl16, vout, vtag, vfl = 1, 5, 3, 6
        acc = base + 36; t0 = acc + 8
        tg = TAGS and word == 1
        if word == 0: s(f"ds_read_b128 {vr(base+32)}, v4")
        s(f"s_mov_b32 s{sIt}, 0")
        NP = P["npoll"]
        s.raw(f"{lab}f:\nbuffer_load_dword v{t0}, v{vfl}, s[{sWS}:{sWS+3}], s97 offen offset:{4*word} sc1\ns_add_u32 s{sIt}, s{sIt}, 1\ns_cmp_gt_u32 s{sIt}, {SPIN}\ns_cbranch_scc1 {lab}g\ns_waitcnt vmcnt(0)\nv_cmp_ne_u32 vcc, s{sNONCE}, v{t0}\ns_cbranch_vccnz {lab}f\n{lab}g:")
        s.vm = []
        stamp(s, "G%d" % word)
        if tg:
            s(f"s_mov_b32 s{sIt}, 0"); s.raw(f"{lab}:")
        for src in range(8):
            s(f"s_add_u32 s{sTm}, s{sMB}, {7168*src}\ns_cmp_eq_u32 s{sM2}, {src}\ns_cselect_b32 s{sTm}, 0x80000000, s{sTm}\nbuffer_load_dwordx4 {vr(base+4*src)}, v{vl16}, s[{sWS}:{sWS+3}], s{sTm} offen sc1")
        if tg:
            s(f"v_mov_b32 v{t0+1}, 0")
            for src in range(8):
                r = base + 4*src
                s(f"v_xor_b32 v{t0}, v{r}, v{vtag}\nv_bitop3_b32 v{t0}, v{t0}, v{r+1}, v{vtag} bitop3:0xf9\nv_bitop3_b32 v{t0}, v{t0}, v{r+2}, v{vtag} bitop3:0xf6\nv_bitop3_b32 v{t0}, v{t0}, v{r+3}, v{vtag} bitop3:0xf9")
                s(f"s_cmp_eq_u32 s{sM2}, {src}\ns_cselect_b32 s{sTm}, 0, 0x10001\nv_and_or_b32 v{t0+1}, v{t0}, s{sTm}, v{t0+1}")
            s(f"v_cmp_ne_u32 vcc, 0, v{t0+1}\ns_add_u32 s{sIt}, s{sIt}, 1\ns_cmp_gt_u32 s{sIt}, {SPIN}\ns_cbranch_scc1 {lab}x\ns_cbranch_vccnz {lab}")
            s.raw(f"{lab}x:")
        if word == 1: s(f"s_barrier\nds_read_b128 {vr(base+32)}, v7")
        for n, src in enumerate([8] + list(range(8)) if word == 0 else list(range(9))):
            for j in range(4):
                r = base + 4*src + j
                if n == 0: s(f"v_lshlrev_b32 v{acc+2*j}, 16, v{r}\nv_and_b32 v{acc+2*j+1}, 0xffff0000, v{r}")
                else: s(f"v_lshlrev_b32 v{t0}, 16, v{r}\nv_and_b32 v{t0+1}, 0xffff0000, v{r}\nv_pk_add_f32 {vr(acc+2*j,2)}, {vr(acc+2*j,2)}, {vr(t0,2)}")
        for j in range(4): s(f"v_cvt_pk_bf16_f32 v{acc+j}, v{acc+2*j}, v{acc+2*j+1}")
        s(f"buffer_store_dwordx2 {vr(acc,2)}, v{vout}, s[{sOUT}:{sOUT+3}], s{sOA} offen")
        s(f"buffer_store_dwordx2 {vr(acc+2,2)}, v{vout}, s[{sOUT}:{sOUT+3}], s{sOB} offen")
    consume(L, "L_lc", 44, 0)
    stamp(L, "E")
    L(f"s_cmp_lg_u32 s{sLW}, 3\ns_cbranch_scc1 L_two\ns_barrier\ns_branch L_fin")
    L.raw("L_two:")
    L(f"s_add_u32 s{sMB}, s{sMB}, 4096\ns_mov_b32 s{sOA}, s{sOC}\ns_add_u32 s{sOB}, s{sOA}, {16*1792}")
    consume(L, "L_ld", 92, 1)
    L(f"s_add_u32 s3, s{sH}, s{sLW}\ns_cmp_lg_u32 s3, 0\ns_cbranch_scc1 L_fin")
    lane0_off(L, 4, 5)
    L(f"v_mov_b32 v5, s{sNONCE}\ns_lshl_b32 s3, s{sBR}, 3\ns_add_u32 s3, s3, s{sBG}\ns_lshl_b32 s3, s3, 7\nbuffer_store_dword v5, v4, s[{sWS}:{sWS+3}], s3 offen sc1")
    L.raw("L_fin:")
    if stamps:
        if "F" in stamps: L("s_waitcnt vmcnt(0)"); stamp(L, "F")
        if not enc: put_stamps(L, 8, 8)
    if enc and enc[0] == "l":
        L.raw(f"s_waitcnt vmcnt(0) lgkmcnt(0)\ns_add_u32 s72, s72, 3000\nL_padl:\ns_memrealtime s[74:75]\ns_waitcnt lgkmcnt(0)\ns_sub_u32 s76, s74, s72\ns_cmp_lt_i32 s76, 0\ns_cbranch_scc1 L_padl")
    if P["padto"]:
        L.raw(f"s_waitcnt vmcnt(0) lgkmcnt(0)\ns_add_u32 s70, s70, {P['padto']*100}\nL_pad:\ns_memrealtime s[72:73]\ns_waitcnt lgkmcnt(0)\ns_sub_u32 s74, s72, s70\ns_cmp_lt_i32 s74, 0\ns_cbranch_scc1 L_pad")
    L.raw("L_end:\ns_endpgm")
    out.append(L.text()); info["loader_instrs"] = nl + len(L.ins)
    body = "\n".join(out)
    txt = f"""{HEADER}; @launch grid=(256,1,1) block=(512,1,1) lds=163840
; produced by my generator script gen5.py; params: {json.dumps({k: P[k] for k in P if k != 'stamps'})}
.amdgcn_target "amdgcn-amd-amdhsa--gfx950"
.text
.globl {NAME}
.p2align 8
.type {NAME},@function
{NAME}:
{body}
.section .rodata,"a"
.p2align 6
.amdhsa_kernel {NAME}
  .amdhsa_next_free_vgpr 256
  .amdhsa_next_free_sgpr 102
  .amdhsa_accum_offset 256
  .amdhsa_group_segment_fixed_size 0
  .amdhsa_kernarg_size 104
  .amdhsa_user_sgpr_count 2
  .amdhsa_user_sgpr_kernarg_segment_ptr 1
  .amdhsa_system_sgpr_workgroup_id_x 1
.end_amdhsa_kernel
"""
    return txt, info

if __name__ == "__main__":
    kw = json.loads(sys.argv[2]) if len(sys.argv) > 2 else {}
    txt, info = gen(**kw)
    open(sys.argv[1], "w").write(txt)
    print(sys.argv[1], info, len(txt))
```

```python
import sys, json
from isa import Stream, I
NAME = "concat_heads__gqa_block_cached__mha_block_cached__near_ridge_kernel"
HEADER = open("concat_heads__gqa_block_cached__mha_block_cached__near_ridge.s.ref").read().split("; @launch")[0]

DEF = dict(D=3, PD=2, rot1=0, rot2=0, pW="", pX="", pK="nt", pV="", pVB="", pO="", kbar=12,
           classes=[{"K": {3: [0, 1], 6: [2, 3]}}], clsel="bg", wsoff=0, stamps=0, prefetch_code=0, prio=0, lprio=0, budget=2,
           padto=0, enc=None, trace=0, noload=0, nomfma=0, merge=1, lat=7, touch=0, pflag=20, probe=None, xmap=0, fake=0, pOut="")
LW, LX, LK = 0, 65536, 98304
LP = LK + 16384
EPOCH, PFLAG, RFLAG, STAMP, PBUF, MBOX, WSSZ = 0, 0x1000, 0x10000, 0x20000, 0x100000, 0x400000, 0x1400000
SPIN = 200000
sWAVE, sBR, sHG, sBG, sHH, sH, sBST, sKVS = 30, 31, 32, 33, 34, 35, 36, 37
sW, sX, sK, sV, sO, sWS, sOUT = 40, 44, 48, 52, 56, 60, 64
sNONCE = 68
MF = "v_mfma_f32_16x16x32_bf16"
def vr(a, n=4): return f"v[{a}:{a+n-1}]"

def sched(st, mf, items, budget):
    heads = [0]*len(items); n = len(mf)
    sufs = []
    for ch in items:
        a = [0]*len(ch); b = [0]*len(ch); ms = mh = 10**9
        for j in range(len(ch)-1, -1, -1):
            ms = min(ms, ch[j][1]); mh = min(mh, ch[j][2]); a[j] = ms; b[j] = mh
        sufs.append((a, b))
    for p in range(-1, n):
        if p >= 0: st(mf[p])
        room = budget(p) if p >= 0 else 10**9
        while True:
            best = None
            for ci, ch in enumerate(items):
                h = heads[ci]
                if h < len(ch) and ch[h][0] <= p:
                    key = (0 if sufs[ci][1][h] <= p+1 else 1, sufs[ci][0][h])
                    if best is None or key < best[0]: best = (key, ci)
            if best is None: break
            key, ci = best
            r, sd, hd, x, c = items[ci][heads[ci]]
            if key[0] and room < c and p < n-1: break
            x() if callable(x) else st(x)
            room -= c; heads[ci] += 1
    for ci, ch in enumerate(items):
        assert heads[ci] == len(ch), ("unscheduled", ch[heads[ci]])

def gen(**kw):
    P = dict(DEF); P.update(kw)
    D, PD, LAT, MERGE = P["D"], P["PD"], P["lat"], P["merge"]
    stamps = P["stamps"]; enc = P["enc"]
    if enc: stamps = {enc[1]: 1}
    NB = 29 if MERGE else 30
    out = []
    c = Stream()
    c("s_cmp_ge_u32 s2, 256\ns_cbranch_scc1 L_end")
    if stamps or P["padto"] or P["trace"]: c("s_memrealtime s[70:71]\ns_memtime s[72:73]")
    c("s_load_dwordx16 s[4:19], s[0:1], 0\ns_load_dwordx8 s[20:27], s[0:1], 64\ns_load_dwordx2 s[28:29], s[0:1], 96")
    c(f"v_lshrrev_b32 v1, 6, v0\nv_and_b32 v2, 63, v0\nv_readfirstlane_b32 s{sWAVE}, v1")
    if P["xmap"] == 0: c(f"s_and_b32 s{sBR}, s2, 1\ns_bfe_u32 s{sHG}, s2, 0x20001")
    elif P["xmap"] == 1: c(f"s_bfe_u32 s{sBR}, s2, 0x10002\ns_xor_b32 s{sBR}, s{sBR}, 1\ns_and_b32 s{sHG}, s2, 3")
    elif P["xmap"] == 2: c(f"s_and_b32 s{sBR}, s2, 1\ns_xor_b32 s{sBR}, s{sBR}, 1\ns_bfe_u32 s{sHG}, s2, 0x20001")
    elif P["xmap"] == 3: c(f"s_bfe_u32 s{sBR}, s2, 0x10002\ns_and_b32 s{sHG}, s2, 3")
    c(f"s_lshr_b32 s{sBG}, s2, 5\ns_bfe_u32 s{sHH}, s2, 0x20003\ns_lshl_b32 s{sH}, s{sHG}, 2\ns_add_u32 s{sH}, s{sH}, s{sHH}")
    c(f"s_lshl_b32 s{sBST}, 0x20000, s{sBR}\ns_sub_u32 s{sKVS}, 1, s{sBR}")
    c(f"s_cmp_ge_u32 s{sWAVE}, 4\ns_cbranch_scc1 L_loader")
    out.append(c.text())

    def ws_srd(s):
        s(f"s_add_u32 s{sWS}, s28, {P['wsoff']}\ns_addc_u32 s{sWS+1}, s29, 0\ns_and_b32 s{sWS+1}, s{sWS+1}, 0xffff\ns_mov_b32 s{sWS+2}, {WSSZ}\ns_mov_b32 s{sWS+3}, 0x20000")
    def load_nonce(s):
        s(f"s_lshl_b32 s3, s{sBR}, 3\ns_add_u32 s3, s3, s{sBG}\ns_lshl_b32 s3, s3, 7\ns_add_u32 s38, s{sWS}, s3\ns_addc_u32 s39, s{sWS+1}, 0")
        s(f"s_load_dword s{sNONCE}, s[38:39], {EPOCH}")
    def group_regs(s, sg, sm):
        s(f"s_lshl_b32 s{sg}, s{sBR}, 3\ns_add_u32 s{sg}, s{sg}, s{sBG}\ns_lshl_b32 s{sg}, s{sg}, 1\ns_and_b32 s3, s{sHH}, 1\ns_add_u32 s{sg}, s{sg}, s3")
        s(f"s_lshl_b32 s{sm}, s{sHG}, 1\ns_lshr_b32 s3, s{sHH}, 1\ns_add_u32 s{sm}, s{sm}, s3")
    def lane0_off(s, dst, tmp):
        s(f"v_mbcnt_lo_u32_b32 v{tmp}, -1, 0\nv_mbcnt_hi_u32_b32 v{tmp}, -1, v{tmp}\nv_min_u32 v{tmp}, 1, v{tmp}\nv_lshlrev_b32 v{dst}, 31, v{tmp}")
    def put_stamps(s, n, tmp):
        s("s_waitcnt lgkmcnt(0)")
        s(f"s_lshl_b32 s3, s2, 3\ns_add_u32 s3, s3, s{sWAVE}\ns_lshl_b32 s3, s3, 6\ns_add_u32 s3, s3, {STAMP}")
        lane0_off(s, tmp+4, tmp+5)
        for j in range(0, n, 2):
            for q in range(4): s(f"v_mov_b32 v{tmp+q}, s{70+2*j+q}")
            s(f"buffer_store_dwordx4 {vr(tmp)}, v{tmp+4}, s[{sWS}:{sWS+3}], s3 offen offset:{8*j}")
    def stamp(s, label):
        if stamps and label in stamps: s(f"s_memrealtime s[{70+2*stamps[label]}:{71+2*stamps[label]}]")

    s = Stream()
    vB0 = 3; aW = 8; aX = 16; AB = 20; BB = 36; F = 68
    NAB = 3 if PD == 2 else 4
    if P["prio"]: s(f"s_setprio {P['prio']}")
    sBP, sDH, sT5, sG, sM, sO0, sO1, sF0, sF1, sPB, sPF, sLP, sSX = 4, 5, 6, 14, 15, 16, 17, 18, 19, 20, 21, 24, 25
    s(f"v_lshrrev_b32 v4, 4, v2\nv_bfe_u32 v5, v2, 2, 2\nv_and_b32 v6, 3, v2\nv_and_b32 v7, 15, v2")
    s(f"v_lshl_add_u32 v{vB0}, v4, 3, v5\nv_lshlrev_b32 v{vB0}, 9, v{vB0}\nv_lshl_add_u32 v{vB0}, v6, 3, v{vB0}\nv_lshl_add_u32 v{vB0}, v5, 5, v{vB0}")
    s(f"v_and_b32 v0, 1, v4\nv_lshl_add_u32 v{vB0}, v0, 7, v{vB0}")
    s(f"s_and_b32 s76, s{sWAVE}, 1\ns_lshr_b32 s77, s{sWAVE}, 1\ns_lshl_b32 s3, s77, 8")
    for T in range(8):
        s(f"s_add_u32 s78, s3, {T<<5}\nv_xor_b32 v{aW+T}, s78, v{vB0}")
    s(f"v_lshrrev_b32 v0, 1, v7\nv_xor_b32 v0, v0, v4\nv_lshlrev_b32 v0, 4, v0\nv_lshl_add_u32 v0, v7, 7, v0")
    s(f"s_lshl_b32 s78, s76, 13\ns_lshl_b32 s79, s77, 12\ns_add_u32 s78, s78, s79\ns_add_u32 s78, s78, {LX}")
    s(f"v_add_u32 v{aX}, s78, v0\nv_xor_b32 v{aX+1}, 64, v{aX}\nv_xor_b32 v{aX+2}, 0x1000, v{aX}\nv_xor_b32 v{aX+3}, 0x1000, v{aX+1}")
    s(f"v_lshrrev_b32 v0, 1, v4\nv_xor_b32 v0, v0, v7\nv_lshlrev_b32 v0, 4, v0\nv_lshl_add_u32 v0, v7, 9, v0\nv_and_b32 v1, 1, v4\nv_lshl_add_u32 v0, v1, 3, v0")
    s(f"s_lshl_b32 s78, s76, 15\ns_lshl_b32 s79, s77, 8\ns_add_u32 s78, s78, s79\ns_add_u32 s78, s78, {LK}\nv_add_u32 v1, s78, v0")
    s("s_waitcnt lgkmcnt(0)")
    s(f"s_mov_b32 s{sBP}, s76\ns_mov_b32 s{sDH}, s77\ns_mov_b32 s{sSX}, s78")
    ws_srd(s); load_nonce(s)
    s(f"s_and_b32 s23, s{sHH}, 1\ns_lshl_b32 s23, s23, 6\ns_mul_i32 s{sT5}, s{sDH}, {7<<5}\ns_add_u32 s{sT5}, s{sT5}, s23")
    for t in range(1, 7): s(f"s_add_u32 s{sT5+t}, s{sT5}, {t<<5}")
    group_regs(s, sG, sM)
    s(f"s_lshl_b32 s22, s{sBP}, 2\ns_mul_i32 s23, s{sDH}, 3\ns_add_u32 s22, s22, s23\ns_xor_b32 s23, s22, 2\ns_lshl_b32 s3, s{sG}, 3\ns_add_u32 s22, s22, s3\ns_add_u32 s23, s23, s3")
    s(f"s_mul_i32 s3, s{sM}, 7168\ns_add_u32 s3, s3, {MBOX}\ns_mul_i32 s{sO0}, s22, 57344\ns_add_u32 s{sO0}, s{sO0}, s3\ns_mul_i32 s{sO1}, s23, 57344\ns_add_u32 s{sO1}, s{sO1}, s3")
    s(f"s_lshl_b32 s3, s{sM}, 2\ns_add_u32 s3, s3, {RFLAG}\ns_lshl_b32 s{sF0}, s22, 7\ns_add_u32 s{sF0}, s{sF0}, s3\ns_lshl_b32 s{sF1}, s23, 7\ns_add_u32 s{sF1}, s{sF1}, s3")
    s(f"s_lshl_b32 s22, s{sBP}, 1\ns_add_u32 s22, s22, s{sDH}\ns_lshl_b32 s{sPB}, s2, 13\ns_lshl_b32 s23, s22, 11\ns_add_u32 s{sPB}, s{sPB}, s23\ns_add_u32 s{sPB}, s{sPB}, {PBUF}")
    s(f"s_lshl_b32 s{sPF}, s2, 7\ns_lshl_b32 s23, s22, 2\ns_add_u32 s{sPF}, s{sPF}, s23\ns_add_u32 s{sPF}, s{sPF}, {PFLAG}")
    s(f"s_lshl_b32 s{sLP}, s22, 11\ns_add_u32 s{sLP}, s{sLP}, {LP}\ns_mov_b32 s26, 0x3db8aa3b")

    accT = {0:128, 1:240, 2:144, 3:160, 4:176, 5:192, 6:208, 7:224}
    acc1 = lambda T, qt: accT[T] + 4*qt
    accN = lambda t, k4: 128 + 16*t + 4*k4
    NA = lambda l, t: F + 4*(l*7 + t)
    mf = []; items = []; stepstart = {}; tiles = []
    def add_tile(i, t):
        tiles.append((i, t, len(mf))); ab = AB + 4*((len(tiles)-1) % NAB)
        for k in range(4):
            if i < 14:
                a = acc1(t, k); mf.append(f"{MF} {vr(a)}, {vr(ab)}, {vr(BB+16*(i%2)+4*k)}, {'0' if i == 0 else vr(a)}")
            else:
                a = accN(t, k); mf.append(f"{MF} {vr(a)}, {vr(BB+16*(i%2)+4*k)}, {vr(ab)}, {'0' if i in (14, 22) else vr(a)}")
    for i in range(14):
        stepstart[i] = len(mf)
        for T in range(8): add_tile(i, T)
    S0 = len(mf); SK, SS = 240, 160
    def kfr(l, kt, sx):
        j = sx*4 + l*2 + kt
        return F + 4*j if j < 15 else 4
    for sx in range(4):
        for l in (1, 0):
            for kt in range(2):
                for q2 in range(2):
                    d = (SK, SS)[l] + 8*kt + 4*q2
                    mf.append(f"{MF} {vr(d)}, {vr(kfr(l,kt,sx))}, {vr(acc1(2*sx, 2*l+q2))}, {'0' if sx == 0 else vr(d)}")
    for i in range(14, 28 if MERGE else 30):
        stepstart[i] = len(mf)
        for t in range(7): add_tile(i, t)
    PRl1 = [16, 32, 124, 4] if (MERGE and NAB == 3) else None
    def PR(l, hd, q):
        if l == 0: return 240 + 8*hd + 4*q
        return PRl1[2*hd+q] if MERGE else BB + 8*hd + 4*q
    fin = {}
    tdone = {}
    def add_final(l, t, d0, d1):
        fin[l, t] = (len(mf), d0, d1)
        mf.append(f"{MF} {vr(d0)}, {vr(NA(l,t))}, {vr(PR(l,0,0))}, 0")
        mf.append(f"{MF} {vr(d1)}, {vr(NA(l,t))}, {vr(PR(l,0,1))}, 0")
        mf.append(f"{MF} {vr(d0)}, {vr(accN(t,2*l))}, {vr(PR(l,1,0))}, {vr(d0)}")
        mf.append(f"{MF} {vr(d1)}, {vr(accN(t,2*l))}, {vr(PR(l,1,1))}, {vr(d1)}")
    if MERGE:
        assert NAB == 3
        stepstart[28] = len(mf)
        def ft(t):
            add_final(0, t, accN(t,1), accN(t,3)); add_final(1, t, NA(0,t), accN(t,0))
        add_tile(28, 0); add_tile(28, 1); stepstart[29] = len(mf)
        add_tile(29, 0); tdone[0] = len(mf)-1; add_tile(29, 1); tdone[1] = len(mf)-1
        for t in range(2, 7):
            add_tile(28, t); add_tile(29, t); tdone[t] = len(mf)-1; ft(t-2)
        ft(5); ft(6)
        order = [(l, t) for t in range(7) for l in range(2)]
    else:
        for t in range(7): tdone[t] = stepstart[29] + 4*t + 3
        order = [(l, t) for l in range(2) for t in range(7)]
        DB = [AB, AB+8] if NAB == 4 else [AB, 12]
        for gi, (l, t) in enumerate(order): add_final(l, t, DB[gi%2], DB[gi%2]+4)
    NM = len(mf)
    ntile = lambda i: 8 if i < 14 else 7
    barpos = {0: -1}
    for i in range(NB-1): barpos[i+1] = stepstart[i] + 4*(ntile(i)-PD) - 1
    def bar(label, pre=None):
        def f():
            if pre: pre()
            s("s_barrier"); stamp(s, label)
        return f
    ev = []
    for k in range(NB):
        pre = (lambda: s("s_waitcnt lgkmcnt(0)")) if (D == 4 and k > 0) else None
        if k == 6: pre = lambda: s(f"s_waitcnt lgkmcnt(0)\ns_add_u32 s{sNONCE}, s{sNONCE}, 0x9E3779B9")
        if MERGE and k == 26: pre = lambda: s("s_waitcnt lgkmcnt(0)")
        ev.append((barpos[k], 0, barpos[k], barpos[k]+1, bar(f"B{k}", pre), 1))
    for gi, (i, T, m0) in enumerate(tiles):
        ab = AB + 4*(gi % NAB)
        pos = tiles[gi-PD][2] if gi >= PD else -1
        if gi >= NAB: pos = max(pos, tiles[gi-NAB][2] + 3)
        slot = LW + (i % 4)*16384
        sd = m0 - LAT
        if i == 14: ev.append((pos, 1, sd, m0, f"v_xor_b32 v{aW+T}, s{sT5+T}, v{vB0}", 1))
        ev.append((pos, 2, sd, m0, f"ds_read_b64_tr_b16 {vr(ab,2)}, v{aW+T} offset:{slot}", 1))
        ev.append((pos+1 if pos >= 0 else -1, 2, sd, m0, f"ds_read_b64_tr_b16 {vr(ab+2,2)}, v{aW+T} offset:{slot+2048}", 1))
    for i in range(30):
        for q4 in range(4):
            if i == 29 and MERGE: pos = stepstart[28] + q4//2
            else: pos = barpos[i] + (2, 3, 4, 5)[q4] if i > 0 else -1
            off = ((i//2) % 2)*16384 + (q4 % 2)*2048
            use = stepstart[i] + q4
            ev.append((pos, 3, use - LAT, use, f"ds_read_b128 {vr(BB+16*(i%2)+4*q4)}, v{aX+2*(q4//2)+(i%2)} offset:{off}", 1))
    ev.sort(key=lambda e: (e[0], e[1]))
    items.append([(e[0], e[2], e[3], e[4], e[5]) for e in ev])
    ch = []; kb = barpos[P["kbar"]]
    for sx in range(4):
        for e in range(2):
            use = S0 + 8*sx
            ch.append((kb, use - LAT - 30, use, f"v_xor_b32 v0, {(4*sx+2*e) << 4}, v1", 1))
            for l in (1, 0):
                for kt in range(2):
                    ch.append((kb, use - LAT - 30, use, f"ds_read_b64 {vr(kfr(l,kt,sx)+2*e,2)}, v0 offset:{l*16384 + kt*8192}", 1))
    items.append(ch)
    cvt = lambda d, a: f"v_cvt_pk_bf16_f32 v{d}, v{a}, v{a+1}"
    for sx in range(4):
        ch = []
        rdy = stepstart[13] + 8*sx + 7 + (2 if sx < 3 else 3)
        for qt in (2, 3, 0, 1):
            a, b = acc1(2*sx, qt), acc1(2*sx+1, qt)
            dl = S0 + 8*sx + (0 if qt >= 2 else 4)
            if sx == 0: dl = min(dl, S0 + (0 if qt >= 2 else 4))
            if sx == 1: dl = S0
            ch += [(rdy, dl-1, dl, x, 1) for x in (cvt(a, a), cvt(a+1, a+2), cvt(a+2, b), cvt(a+3, b+2))]
        items.append(ch)
    ch = []; p14 = stepstart[14]; R = F; T0 = F + 16
    for x in ("v_lshrrev_b32 v0, 4, v2", "v_lshlrev_b32 v0, 9, v0", "v_and_b32 v1, 15, v2", "v_lshl_add_u32 v0, v1, 4, v0", f"v_add_u32 v0, s{sSX}, v0"):
        ch.append((S0+24, p14-2, p14, x, 1))
    for j in range(4):
        ch.append((S0+30, p14+2, p14+6, (lambda j=j: s(f"ds_write_b128 v0, {vr(SS+4*j)} offset:{2048*j}", tag="SW")), 1))
    bs = p14 + 10
    def bS():
        s.wait_lds_tag("SW"); s("s_barrier"); stamp(s, "BS")
    ch.append((p14+1, bs, bs+1, "v_xor_b32 v0, 0x100, v0", 1))
    ch.append((bs, bs, bs+1, bS, 2))
    dl = stepstart[19]
    for j in range(4): ch.append((bs, bs+4, dl, f"ds_read_b128 {vr(R+4*j)}, v0 offset:{2048*j}", 1))
    rd = bs + 12
    sm = [f"v_add_f32 v{SK+j}, v{SK+j}, v{R+j}" for j in range(16)]
    sv = lambda q2: [SK + 8*kt + 4*q2 + r for kt in range(2) for r in range(4)]
    M = [T0, T0+1]; Tm = [T0+2, T0+3]; SU = [T0+4, T0+5]; PF = T0 + 8
    def both(f):
        for q2 in range(2): sm.append(f(q2))
    both(lambda q: f"v_max3_f32 v{M[q]}, v{sv(q)[0]}, v{sv(q)[1]}, v{sv(q)[2]}")
    both(lambda q: f"v_max3_f32 v{M[q]}, v{M[q]}, v{sv(q)[3]}, v{sv(q)[4]}")
    both(lambda q: f"v_max3_f32 v{M[q]}, v{M[q]}, v{sv(q)[5]}, v{sv(q)[6]}")
    both(lambda q: f"v_max_f32 v{M[q]}, v{M[q]}, v{sv(q)[7]}")
    for pl in ("v_permlane32_swap_b32", "v_permlane16_swap_b32"):
        both(lambda q: f"v_mov_b32 v{Tm[q]}, v{M[q]}"); both(lambda q: f"{pl} v{M[q]}, v{Tm[q]}"); both(lambda q: f"v_max_f32 v{M[q]}, v{M[q]}, v{Tm[q]}")
    both(lambda q: f"v_mul_f32 v{M[q]}, s26, v{M[q]}")
    for j in range(8): both(lambda q: f"v_fma_f32 v{sv(q)[j]}, v{sv(q)[j]}, s26, -v{M[q]}")
    for j in range(8): both(lambda q: f"v_exp_f32 v{sv(q)[j]}, v{sv(q)[j]}")
    both(lambda q: f"v_add_f32 v{SU[q]}, v{sv(q)[0]}, v{sv(q)[1]}")
    for j in range(2, 8): both(lambda q: f"v_add_f32 v{SU[q]}, v{SU[q]}, v{sv(q)[j]}")
    for pl in ("v_permlane32_swap_b32", "v_permlane16_swap_b32"):
        both(lambda q: f"v_mov_b32 v{Tm[q]}, v{SU[q]}"); both(lambda q: f"{pl} v{SU[q]}, v{Tm[q]}"); both(lambda q: f"v_add_f32 v{SU[q]}, v{SU[q]}, v{Tm[q]}")
    both(lambda q: f"v_rcp_f32 v{SU[q]}, v{SU[q]}")
    for j in range(8): both(lambda q: f"v_mul_f32 v{sv(q)[j]}, v{sv(q)[j]}, v{SU[q]}")
    for j in range(4): both(lambda q: cvt(PF+4*q+j, sv(q)[2*j]))
    sm += ["v_lshlrev_b32 v1, 4, v2", f"v_add_u32 v0, s{sLP}, v1"]
    for q in range(2):
        sm.append(f"ds_write_b128 v0, {vr(PF+4*q)} offset:{1024*q}")
        sm.append(f"buffer_store_dwordx4 {vr(PF+4*q)}, v1, s[{sWS}:{sWS+3}], s{sPB} offen offset:{1024*q} sc1")
    sm += ["v_min_u32 v2, 1, v2", "v_lshlrev_b32 v2, 31, v2", f"v_mov_b32 v3, s{sNONCE}", "v_xor_b32 v15, 0x800, v0"]
    for x in sm: ch.append((rd, dl, dl, x, 2 if x.startswith("v_exp") or x.startswith("v_rcp") else 1))
    fp = stepstart[P["pflag"]]
    ch.append((fp, fp+2, fp+8, f"s_waitcnt vmcnt(0)\nbuffer_store_dword v3, v2, s[{sWS}:{sWS+3}], s{sPF} offen sc1", 2))
    items.append(ch)
    ch = []
    for t in range(7):
        rdy = stepstart[21] + 4*t + 3 + 3; dl = stepstart[22] + 4*t
        for l in range(2):
            a, b, d = accN(t, 2*l), accN(t, 2*l+1), NA(l, t)
            ch += [(rdy, dl-1, dl, x, 1) for x in (cvt(d, a), cvt(d+1, a+2), cvt(d+2, b), cvt(d+3, b+2))]
    items.append(ch)
    ch = []
    prdy = (stepstart[28] + 3) if MERGE else stepstart[29] + 1
    for l in range(2):
        for hd in range(2):
            for q in range(2):
                use = fin[l, 0][0]
                ch.append((prdy if not (MERGE and l) else stepstart[29] + 3, use - LAT - 4, use, f"ds_read_b128 {vr(PR(l,hd,q))}, v{(0,15)[l]} offset:{hd*8192 + q*1024}", 1))
    items.append(ch)
    ch = []
    for (l, t) in order:
        rdy = tdone[t] + 3; a, b = accN(t, 2*l), accN(t, 2*l+1)
        dl = fin[0, t][0] if MERGE else fin[l, t][0] + 2
        ch += [(min(rdy, dl-1), dl-1, dl, x, 1) for x in (cvt(a, a), cvt(a+1, a+2), cvt(a+2, b), cvt(a+3, b+2))]
    items.append(ch)
    ch = []; cnt = [0, 0]
    for gi, (l, t) in enumerate(order):
        m0, d0, d1 = fin[l, t]
        rdy = min(m0 + 3 + 3, NM-1)
        dl = NM if MERGE else min(fin[order[gi+2]][0] if gi+2 < 14 else NM, NM)
        sdl = min(m0 + 12, dl)
        ch += [(rdy, sdl, dl, x, 1) for x in (cvt(d0, d0), cvt(d0+1, d0+2), cvt(d0+2, d1), cvt(d0+3, d1+2))]
        so = (sO0, sO1)[l]
        pre = f"s_add_u32 s{so}, s{so}, 4096\n" if t == 4 else ""
        ch.append((rdy, sdl, dl, (lambda x=pre + f"buffer_store_dwordx4 {vr(d0)}, v1, s[{sWS}:{sWS+3}], s{so} offen offset:{1024*(t%4)} sc1", l=l: s(x, tag=f"O{l}")), 1))
    items.append(ch)
    if P["nomfma"]:
        mf = ["s_nop 0"]*len(mf); items[0] = [e for e in items[0] if callable(e[3])]
    firsts = set(m for (_, _, m) in tiles)
    sched(s, mf, items, lambda p: P["budget"] - (1 if (p+1) in firsts else 0))
    stamp(s, "E")
    s.wait_vm_tags({"O0"})
    s(f"buffer_store_dword v3, v2, s[{sWS}:{sWS+3}], s{sF0} offen sc1")
    s.wait_vm_tags({"O1"})
    s(f"buffer_store_dword v3, v2, s[{sWS}:{sWS+3}], s{sF1} offen sc1")
    if stamps:
        stamp(s, "F")
        if not enc: put_stamps(s, 8, 8)
    if enc and enc[0] == "c":
        s.raw(f"s_waitcnt vmcnt(0) lgkmcnt(0)\ns_add_u32 s72, s72, 3000\nL_padc:\ns_memrealtime s[74:75]\ns_waitcnt lgkmcnt(0)\ns_sub_u32 s76, s74, s72\ns_cmp_lt_i32 s76, 0\ns_cbranch_scc1 L_padc")
    s("s_endpgm")
    out.append(s.text())
    info = dict(compute_instrs=len(s.ins), nops=s.nnop, waits=s.nwait, mfma=NM)

    L = Stream()
    L("L_loader:")
    if P["lprio"]: L(f"s_setprio {P['lprio']}")
    sLW = 69
    L(f"s_sub_u32 s{sLW}, s{sWAVE}, 4")
    vWq, vWo, vXx, vXv, vKk, vST = 8, 12, 16, 20, 24, 128
    L(f"v_lshrrev_b32 v3, 5, v2\nv_and_b32 v4, 31, v2\ns_and_b32 s3, s{sLW}, 1\ns_lshl_b32 s3, s3, 3\ns_lshl_b32 s38, s{sLW}, 3")
    for p in range(4):
        L(f"v_add_u32 v5, {(2*p)&3}, v3\nv_lshlrev_b32 v5, 1, v5\nv_or_b32 v5, s3, v5\nv_xor_b32 v5, v5, v4\nv_lshlrev_b32 v5, 4, v5")
        L(f"v_add_u32 v6, {2*p}, v3\nv_add_u32 v6, s38, v6\nv_lshl_add_u32 v{vWq+p}, v6, 13, v5\nv_mul_u32_u24 v6, 896, v6\nv_add_u32 v{vWo+p}, v6, v5")
        if p: L(f"v_subrev_u32 v{vWq+p}, {1024*p}, v{vWq+p}\nv_subrev_u32 v{vWo+p}, {1024*p}, v{vWo+p}")
    L(f"v_lshrrev_b32 v3, 3, v2\nv_and_b32 v4, 7, v2\nv_lshrrev_b32 v7, 4, v2\nv_xor_b32 v4, v4, v7\ns_lshl_b32 s38, s{sLW}, 5")
    for p in range(4):
        L(f"v_xor_b32 v5, {(p&1)<<2}, v4\nv_lshlrev_b32 v5, 4, v5\nv_add_u32 v6, {8*p}, v3\nv_lshl_add_u32 v{vXv+p}, v6, 9, v5")
        L(f"v_add_u32 v6, s38, v6\nv_mul_u32_u24 v6, 896, v6\nv_add_u32 v{vXx+p}, v6, v5")
        if p: L(f"v_subrev_u32 v{vXv+p}, {1024*p}, v{vXv+p}\nv_subrev_u32 v{vXx+p}, {1024*p}, v{vXx+p}")
    sJ1, sWo_, sXo_, sKo, sKo2, sKm, sM0W, sM0X, sJW, sJX, sWb, sXb, sJ2, sVa, sVb = 93, 4, 5, 6, 7, 8, 86, 87, 88, 89, 90, 91, 92, 9, 10
    L(f"s_lshl_b32 s{sM0W}, s{sLW}, 12\ns_add_u32 s{sM0X}, s{sM0W}, {LX}")
    r1 = P["rot1"]
    if r1 == 7:
        L(f"s_lshl_b32 s3, s{sHH}, 1\ns_add_u32 s{sJ1}, s3, s{sBG}")
        for _ in range(2): L(f"s_cmp_ge_u32 s{sJ1}, 7\ns_cselect_b32 s3, 7, 0\ns_sub_u32 s{sJ1}, s{sJ1}, s3")
    elif r1 == 4: L(f"s_add_u32 s3, s{sHH}, s{sBG}\ns_and_b32 s3, s3, 3\ns_lshl_b32 s{sJ1}, s3, 1")
    elif r1 == 2: L(f"s_xor_b32 s3, s{sHH}, s{sBG}\ns_and_b32 s3, s3, 1\ns_lshl_b32 s{sJ1}, s3, 2")
    elif r1 == 3: L(f"s_add_u32 s3, s{sHH}, s{sBG}\ns_mul_i32 s{sJ1}, s3, 0x5556\ns_lshr_b32 s{sJ1}, s{sJ1}, 16\ns_mul_i32 s{sJ1}, s{sJ1}, 3\ns_sub_u32 s3, s3, s{sJ1}\ns_mul_i32 s{sJ1}, s3, 5\ns_lshr_b32 s{sJ1}, s{sJ1}, 1")
    else: L(f"s_mov_b32 s{sJ1}, 0")
    r2 = P["rot2"]
    if r2 == 4: L(f"s_and_b32 s{sJ2}, s{sBG}, 3")
    elif r2 == 2: L(f"s_and_b32 s{sJ2}, s{sBG}, 1\ns_lshl_b32 s{sJ2}, s{sJ2}, 1")
    else: L(f"s_mov_b32 s{sJ2}, 0")
    L(f"s_mov_b32 s{sJW}, s{sJ1}\ns_mov_b32 s{sJX}, s{sJ1}\ns_lshl_b32 s{sWb}, s{sH}, 9\ns_mul_i32 s{sXb}, s{sBG}, {128*896}")
    if P["fake"] & 4: L(f"s_mov_b32 s{sWb}, 0\ns_mov_b32 s{sXb}, 0")
    L("s_waitcnt lgkmcnt(0)")
    if P["probe"]:
        lst, pol = P["probe"]
        sizes = [917504,4194304,4194304,3670016,3670016,917504,8388608,8388608,3670016,3670016]
        L(f"v_lshlrev_b32 v40, 4, v2\ns_lshl_b32 s3, s{sLW}, 12\ns_add_u32 m0, s3, {LK}")
        for n, i in enumerate(lst):
            per = sizes[i]//1024
            L(f"s_mov_b32 s{sK}, s{4+2*i}\ns_and_b32 s{sK+1}, s{5+2*i}, 0xffff\ns_mov_b32 s{sK+2}, {sizes[i]}\ns_mov_b32 s{sK+3}, 0x20000")
            L(f"s_lshl_b32 s3, s2, 2\ns_add_u32 s3, s3, s{sLW}\ns_mul_i32 s38, s3, {per}")
            for j in range((per + 1023)//1024):
                L(f"buffer_load_dwordx4 v40, s[{sK}:{sK+3}], s38 offen {pol} lds\ns_add_u32 s38, s38, 1024".replace("  ", " "))
        L("s_waitcnt vmcnt(0)"); stamp(L, "PR")
    L(f"s_cmp_eq_u32 s{sBR}, 0")
    for (dst, i) in ((sW,3),(sX,0),(sK,1),(sV,2),(sO,4)):
        L(f"s_cselect_b32 s{dst}, s{4+2*i}, s{14+2*i}\ns_cselect_b32 s{dst+1}, s{5+2*i}, s{15+2*i}")
    for dst, size in ((sW,3670016),(sX,917504)):
        L(f"s_and_b32 s{dst+1}, s{dst+1}, 0xffff\ns_mov_b32 s{dst+2}, {size}\ns_mov_b32 s{dst+3}, 0x20000")
    def mk(L):
        def dma4(vbase, srd, soff, m0expr, pol, tag):
            if P["noload"] and tag not in ("W0","W1","W2","W3","X0","X1","K"): return
            L(m0expr)
            for p in range(4):
                L(f"buffer_load_dwordx4 v{vbase+p}, s[{srd}:{srd+3}], s{soff} offen offset:{1024*p} {pol} lds".replace("  ", " "), tag=tag)
        def issueW(i):
            m0 = f"s_add_u32 m0, s{sM0W}, {LW + (i%4)*16384}"
            if i < 14:
                if i % 2 == 0:
                    L(f"s_lshl_b32 s{sWo_}, s{sJW}, 19\ns_add_u32 s{sWo_}, s{sWo_}, s{sWb}\ns_add_u32 s{sJW}, s{sJW}, 1\ns_cmp_eq_u32 s{sJW}, 7\ns_cselect_b32 s{sJW}, 0, s{sJW}")
                else: L(f"s_add_u32 s{sWo_}, s{sWo_}, {32*8192}")
                dma4(vWq, sW, sWo_, m0, P["pW"], f"W{i}")
            else:
                k = i - 14
                if k % 8 == 0:
                    L(f"s_xor_b32 s3, s{sH}, {k//8}\ns_mul_i32 s{sWb}, s3, {0 if P['fake'] & 4 else 256*896}\ns_and_b32 s3, s{sHH}, 1\ns_mul_i32 s3, s3, 384\ns_add_u32 s{sWb}, s{sWb}, s3\ns_mov_b32 s{sJW}, s{sJ2}")
                if k % 2 == 0:
                    L(f"s_mul_i32 s{sWo_}, s{sJW}, {64*896}\ns_add_u32 s{sWo_}, s{sWo_}, s{sWb}\ns_add_u32 s{sJW}, s{sJW}, 1\ns_and_b32 s{sJW}, s{sJW}, 3")
                else: L(f"s_add_u32 s{sWo_}, s{sWo_}, {32*896}")
                dma4(vWo, sO, sWo_, m0, P["pO"], f"W{i}")
        def voff(k):
            L(f"s_add_u32 s3, s{sJ2}, {k%4}\ns_and_b32 s3, s3, 3\ns_lshl_b32 s3, s3, 7\ns_add_u32 s{sXo_}, s3, s{(sVa, sVb)[k//4]}")
        def issueX(j):
            m0 = f"s_add_u32 m0, s{sM0X}, {(j%2)*16384}"
            if j < 7:
                L(f"s_lshl_b32 s{sXo_}, s{sJX}, 7\ns_add_u32 s{sXo_}, s{sXo_}, s{sXb}\ns_add_u32 s{sJX}, s{sJX}, 1\ns_cmp_eq_u32 s{sJX}, 7\ns_cselect_b32 s{sJX}, 0, s{sJX}")
                dma4(vXx, sX, sXo_, m0, P["pX"], f"X{j}")
            else:
                voff(j-7); dma4(vXv, sV, sXo_, m0, P["pV"] if j < 11 else P["pVB"], f"X{j}")
        def issueVR(k):
            voff(k)
            for p in range(4):
                L(f"buffer_load_dwordx4 {vr(vST+16*k+4*p)}, v{vXv+p}, s[{sV}:{sV+3}], s{sXo_} offen offset:{1024*p} {P['pV'] if k < 4 else P['pVB']}".rstrip(), tag=f"VR{k}")
        def writeV(j, k):
            for p in range(4):
                L(f"ds_write_b128 v42, {vr(vST+16*k+4*p)} offset:{(j%2)*16384 + 1024*p}")
        def issueK(g):
            dma4(vKk + 4*(g%2), sK, sKo if g < 2 else sKo2, f"s_add_u32 m0, s{sKm}, {4096*g}", P["pK"], "K")
        return issueW, issueX, issueVR, writeV, issueK
    issueW, issueX, issueVR, writeV, issueK = mk(L)
    issueW(0); issueX(0); issueW(1); issueW(2); issueX(1); issueW(3)
    L(f"s_lshl_b32 s3, 0x400000, s{sBR}")
    for dst in (sK, sV): L(f"s_and_b32 s{dst+1}, s{dst+1}, 0xffff\ns_mov_b32 s{dst+2}, s3\ns_mov_b32 s{dst+3}, 0x20000")
    L(f"s_and_b32 s{sO+1}, s{sO+1}, 0xffff\ns_mov_b32 s{sO+2}, 3670016\ns_mov_b32 s{sO+3}, 0x20000")
    L(f"s_mov_b32 s{sOUT}, s24\ns_and_b32 s{sOUT+1}, s25, 0xffff\ns_mov_b32 s{sOUT+2}, {32*32*896*2}\ns_mov_b32 s{sOUT+3}, 0x20000")
    ws_srd(L); load_nonce(L)
    if P["prefetch_code"]:
        L(f"s_cmp_lg_u32 s{sLW}, 0\ns_cbranch_scc1 L_nopf\ns_getpc_b64 s[14:15]\nL_pc:\ns_sub_u32 s14, s14, L_pc-{NAME}\ns_subb_u32 s15, s15, 0")
        L(f"s_bfe_u32 s3, s2, 0x20003\ns_lshl_b32 s3, s3, 13\nv_lshl_add_u32 v5, v2, 7, s3\nv_min_u32 v5, L_end-{NAME}, v5\nglobal_load_dword v40, v5, s[14:15]", tag="PF")
        L.raw("L_nopf:"); L.vm.pop()
    L(f"v_lshrrev_b32 v3, 5, v2\nv_and_b32 v4, 31, v2\nv_bfe_u32 v7, v2, 4, 1\nv_xor_b32 v7, s{sLW}, v7\nv_mul_lo_u32 v7, v7, s{sBST}")
    for p in range(8):
        L(f"v_add_u32 v6, {2*p}, v3\nv_xor_b32 v5, v6, v4\nv_lshlrev_b32 v5, 4, v5\nv_lshl_add_u32 v5, v6, 9, v5\nv_add_u32 v{vKk+p}, v5, v7")
        if p % 4: L(f"v_subrev_u32 v{vKk+p}, {1024*(p%4)}, v{vKk+p}")
    L(f"s_lshr_b32 s3, s{sH}, s{sKVS}\ns_lshl_b32 s3, s3, 14\ns_lshl_b32 s{sKo}, s{sBG}, 2\ns_mul_i32 s{sKo}, s{sKo}, s{sBST}\ns_add_u32 s{sKo}, s{sKo}, s3\ns_add_u32 s{sKo2}, s{sKo}, 8192")
    if P["fake"] & 1: L(f"s_mov_b32 s{sKo}, 0\ns_mov_b32 s{sKo2}, 8192")
    L(f"s_mul_i32 s11, s{sLW}, s{sBST}\ns_add_u32 s{sVa}, s{sKo}, s11\ns_lshl_b32 s3, s{sBR}, 14\ns_xor_b32 s{sVb}, s{sVa}, s3")
    L(f"s_lshl_b32 s{sKm}, s{sLW}, 14\ns_add_u32 s{sKm}, s{sKm}, {LK}")
    sG2, sM2 = 94, 95
    group_regs(L, sG2, sM2)
    L(f"v_lshlrev_b32 v1, 4, v2\nv_add_u32 v42, s{sM0X}, v1")
    if P["touch"]:
        st = P["touch"]
        L(f"v_mul_u32_u24 v44, {st}, v2")
        def touch(srd, sbase, span):
            n = min(64, (span + st - 1)//st + 1)
            L(f"v_cmp_gt_u32 vcc, {n}, v2\nv_mov_b32 v45, 0x80000000\nv_min_u32 v46, {span-4}, v44\nv_cndmask_b32 v45, v45, v46, vcc")
            L(f"buffer_load_dword v47, v45, s[{srd}:{srd+3}], {sbase} offen", tag="T")
        L(f"s_cmp_eq_u32 s{sLW}, 0\ns_cbranch_scc0 L_t1")
        touch(sK, f"s{sKo}", 3*262144 + 16384); L.vm.pop()
        L(f"s_lshl_b32 s3, s{sG2}, 3\ns_mul_i32 s3, s3, 57344\ns_add_u32 s3, s3, {MBOX}")
        touch(sWS, "s3", 8*57344); L.vm.pop()
        L.raw("L_t1:")
        L(f"s_cmp_eq_u32 s{sLW}, 1\ns_cbranch_scc0 L_t2")
        touch(sV, f"s{sKo}", 3*262144 + 32768); L.vm.pop()
        L(f"s_lshl_b32 s3, s2, 13\ns_and_b32 s3, s3, 0xfffe0000\ns_add_u32 s3, s3, {PBUF}")
        touch(sWS, "s3", 131072); L.vm.pop()
        L.raw("L_t2:")
        L(f"s_cmp_eq_u32 s{sLW}, 2\ns_cbranch_scc0 L_t3")
        L(f"s_and_b32 s3, s{sH}, 14\ns_mul_i32 s3, s3, {256*896}")
        touch(sO, "s3", 512*896); L.vm.pop()
        touch(sWS, "0", 0x20000); L.vm.pop()
        L.raw("L_t3:")
        L(f"s_cmp_eq_u32 s{sLW}, 3\ns_cbranch_scc0 L_t4")
        L(f"s_mul_i32 s3, s{sBG}, {128*1792}")
        touch(sOUT, "s3", 128*1792); L.vm.pop()
        L(f"s_lshl_b32 s3, s{sH}, 9")
        touch(sW, "s3", 447*8192+512); L.vm.pop()
        L.raw("L_t4:")
    classes = P["classes"]; ncls = len(classes)
    if ncls > 1:
        sel = {"bg": f"s_and_b32 s3, s{sBG}, {ncls-1}", "hh": f"s_and_b32 s3, s{sHH}, {ncls-1}", "br": f"s_mov_b32 s3, s{sBR}",
               "bgbr": f"s_and_b32 s3, s{sBG}, {ncls//2-1}\ns_lshl_b32 s3, s3, 1\ns_or_b32 s3, s3, s{sBR}",
               "hh1": f"s_lshr_b32 s3, s{sHH}, 1", "bghh": f"s_add_u32 s3, s{sBG}, s{sHH}\ns_and_b32 s3, s3, {ncls-1}"}[P["clsel"]]
        L(sel)
        for ci in range(1, ncls): L(f"s_cmp_eq_u32 s3, {ci}\ns_cbranch_scc1 L_cls{ci}")
    out.append(L.text()); vm0 = list(L.vm); nl = len(L.ins)
    for ci, cl in enumerate(classes):
        L = Stream(); L.vm = list(vm0)
        issueW, issueX, issueVR, writeV, issueK = mk(L)
        L.raw(f"L_cls{ci}:")
        ks = {int(k): v for k, v in cl.get("K", {}).items()}
        vs = {int(k): v for k, v in cl.get("VR", {}).items()}
        staged = set(x for v in vs.values() for x in v)
        reuse = cl.get("reuse", 0)
        first = cl.get("first", "W")
        def extras(k):
            for g in ks.get(k, []): issueK(g)
            for g in vs.get(k, []): issueVR(g)
        extras(-1)
        for k in range(NB):
            tags = {f"W{k}", f"X{k//2}"}
            if k == P["kbar"]: tags.add("K")
            if k == NB-1: tags |= {"P", "W29"}
            if P["trace"]:
                L(f"s_waitcnt lgkmcnt(0)\nv_writelane_b32 v200, s70, {k}\nv_writelane_b32 v201, s72, {k}\ns_memrealtime s[74:75]")
            L.wait_vm_tags(tags)
            if L.lds: L("s_waitcnt lgkmcnt(0)")
            if P["trace"]: L(f"s_waitcnt lgkmcnt(0)\nv_writelane_b32 v202, s74, {k}\ns_memrealtime s[74:75]")
            L("s_barrier")
            if P["trace"]: L(f"s_memrealtime s[70:71]\ns_memtime s[72:73]\ns_waitcnt lgkmcnt(0)\nv_writelane_b32 v203, s74, {k}")
            stamp(L, f"B{k}")
            def doX():
                if k >= 2 and k % 2 == 0 and k//2 + 1 < 15:
                    j = k//2 + 1
                    if j >= 7 and (j-7) in staged: writeV(j, j-7)
                    elif j >= 11 and reuse: writeV(j, j-11)
                    else: issueX(j)
            if first == "E": extras(k)
            if first == "X": doX()
            nw = k + D - 1
            if MERGE and D == 3 and k == 27: nw = 99
            if 4 <= nw < 30: issueW(nw)
            if MERGE and D == 3 and k == 26: issueW(29)
            if first != "X": doX()
            if first != "E": extras(k)
            if k == 6: L(f"s_waitcnt lgkmcnt(0)\ns_add_u32 s{sNONCE}, s{sNONCE}, 0x9E3779B9")
            if k == 14: L("s_barrier")
            if k == 24:
                L(f"s_xor_b32 s3, s2, 8\ns_lshl_b32 s96, s3, 7\ns_lshl_b32 s97, s{sLW}, 2\ns_add_u32 s96, s96, s97\ns_add_u32 s96, s96, {PFLAG}\nv_mov_b32 v41, 0")
                L(f"s_lshl_b32 s97, s3, 13\ns_lshl_b32 s3, s{sLW}, 11\ns_add_u32 s97, s97, s3\ns_add_u32 s97, s97, {PBUF}")
                L(f"buffer_load_dword v43, v41, s[{sWS}:{sWS+3}], s96 offen sc1", tag="PP")
            if k == 26:
                L(f"v_cmp_ne_u32 vcc, s{sNONCE}, v43\ns_cbranch_vccz L_pok{ci}\ns_mov_b32 s98, 0")
                L.raw(f"L_pspin{ci}:\ns_sleep 2\nbuffer_load_dword v43, v41, s[{sWS}:{sWS+3}], s96 offen sc1\ns_add_u32 s98, s98, 1\ns_cmp_gt_u32 s98, {SPIN}\ns_cbranch_scc1 L_pok{ci}\ns_waitcnt vmcnt(0)\nv_cmp_ne_u32 vcc, s{sNONCE}, v43\ns_cbranch_vccnz L_pspin{ci}\nL_pok{ci}:")
                L(f"s_lshl_b32 s3, s{sLW}, 11\ns_add_u32 m0, s3, {LP + 8192}")
                L(f"buffer_load_dwordx4 v1, s[{sWS}:{sWS+3}], s97 offen sc1 lds", tag="P")
                L(f"buffer_load_dwordx4 v1, s[{sWS}:{sWS+3}], s97 offen offset:1024 sc1 lds", tag="P")
        if ci < ncls-1: L("s_branch L_red")
        out.append(L.text()); nl += len(L.ins)
    L = Stream()
    L.raw("L_red:")
    L(f"s_lshl_b32 s3, s{sG2}, 3\ns_add_u32 s3, s3, s{sM2}\ns_lshl_b32 s96, s3, 7\ns_add_u32 s96, s96, {RFLAG}\ns_mul_i32 s97, s3, 57344\ns_add_u32 s97, s97, {MBOX}")
    L(f"s_lshl_b32 s3, s{sLW}, 10\ns_add_u32 s97, s97, s3\nv_and_b32 v41, 7, v2\nv_lshlrev_b32 v41, 2, v41")
    L(f"s_lshr_b32 s3, s{sM2}, 1\ns_lshl_b32 s92, s{sBG}, 2\ns_add_u32 s3, s3, s92\ns_mul_i32 s92, s3, {32*1792}\ns_mul_i32 s3, s{sBR}, 896\ns_add_u32 s92, s92, s3")
    L(f"s_and_b32 s3, s{sHH}, 1\ns_mul_i32 s3, s3, 448\ns_add_u32 s92, s92, s3\ns_and_b32 s3, s{sM2}, 1\ns_mul_i32 s3, s3, 224\ns_add_u32 s92, s92, s3\ns_lshl_b32 s3, s{sLW}, 5\ns_add_u32 s92, s92, s3")
    L(f"v_and_b32 v3, 15, v2\nv_mul_u32_u24 v3, 1792, v3\nv_lshrrev_b32 v4, 4, v2\nv_lshl_add_u32 v3, v4, 3, v3\ns_add_u32 s93, s92, {16*1792}")
    L(f"s_cmp_eq_u32 s{sLW}, 3\ns_cselect_b32 s3, 0x80000000, 0\nv_or_b32 v5, s3, v1\nv_add_u32 v5, 4096, v5\nv_or_b32 v6, s3, v3")
    L("s_mov_b32 s98, 0\ns_mov_b32 s12, 0")
    L.raw(f"L_rspin:\nbuffer_load_dword v43, v41, s[{sWS}:{sWS+3}], s96 offen sc1\ns_add_u32 s98, s98, 1\ns_cmp_gt_u32 s98, {SPIN}\ns_cbranch_scc1 L_rok\ns_waitcnt vmcnt(0)")
    L.raw(f"v_cmp_eq_u32 vcc, s{sNONCE}, v43\ns_nop 1\ns_andn2_b32 s13, vcc_lo, s12\ns_and_b32 s13, s13, 0xff\ns_cbranch_scc0 L_rspin\ns_or_b32 s12, s12, s13")
    for src in range(8):
        L.raw(f"s_bitcmp1_b32 s13, {src}\ns_cbranch_scc0 L_rs{src}\ns_add_u32 s99, s97, {7168*src}")
        L.raw(f"buffer_load_dwordx4 {vr(44+4*src)}, v1, s[{sWS}:{sWS+3}], s99 offen sc1\nbuffer_load_dwordx4 {vr(76+4*src)}, v5, s[{sWS}:{sWS+3}], s99 offen sc1\nL_rs{src}:")
    L.raw("s_cmp_lg_u32 s12, 0xff\ns_cbranch_scc1 L_rspin\nL_rok:")
    if P["trace"]: L(f"s_waitcnt lgkmcnt(0)\nv_writelane_b32 v200, s70, {NB}\nv_writelane_b32 v201, s72, {NB}\ns_memrealtime s[70:71]\ns_memtime s[72:73]")
    stamp(L, "E")
    L("s_waitcnt vmcnt(0)")
    def reduce(base, acc, coff, va):
        t0, t1 = acc + 8, acc + 9
        for src in range(8):
            for j in range(4):
                r = base + 4*src + j
                if src == 0: L(f"v_lshlrev_b32 v{acc+2*j}, 16, v{r}\nv_and_b32 v{acc+2*j+1}, 0xffff0000, v{r}")
                else: L(f"v_lshlrev_b32 v{t0}, 16, v{r}\nv_and_b32 v{t1}, 0xffff0000, v{r}\nv_pk_add_f32 {vr(acc+2*j,2)}, {vr(acc+2*j,2)}, {vr(t0,2)}")
        for j in range(4): L(f"v_cvt_pk_bf16_f32 v{acc+j}, v{acc+2*j}, v{acc+2*j+1}")
        L(f"buffer_store_dwordx2 {vr(acc,2)}, v{va}, s[{sOUT}:{sOUT+3}], s92 offen offset:{coff} {P['pOut']}".rstrip())
        L(f"buffer_store_dwordx2 {vr(acc+2,2)}, v{va}, s[{sOUT}:{sOUT+3}], s93 offen offset:{coff} {P['pOut']}".rstrip())
    reduce(44, 108, 0, 3); reduce(76, 120, 128, 6)
    L(f"s_add_u32 s3, s{sH}, s{sLW}\ns_cmp_lg_u32 s3, 0\ns_cbranch_scc1 L_fin")
    lane0_off(L, 4, 5)
    L(f"v_mov_b32 v5, s{sNONCE}\ns_lshl_b32 s3, s{sBR}, 3\ns_add_u32 s3, s3, s{sBG}\ns_lshl_b32 s3, s3, 7\nbuffer_store_dword v5, v4, s[{sWS}:{sWS+3}], s3 offen sc1")
    L.raw("L_fin:")
    if P["trace"]:
        L(f"s_waitcnt vmcnt(0) lgkmcnt(0)\nv_writelane_b32 v200, s70, {NB+1}\nv_writelane_b32 v201, s72, {NB+1}\ns_memrealtime s[70:71]\ns_memtime s[72:73]\ns_waitcnt lgkmcnt(0)\nv_writelane_b32 v200, s70, {NB+2}\nv_writelane_b32 v201, s72, {NB+2}")
        L(f"s_lshl_b32 s3, s2, 2\ns_add_u32 s3, s3, s{sLW}\ns_lshl_b32 s3, s3, 10\ns_add_u32 s3, s3, {0x1300000}\nbuffer_store_dwordx4 v[200:203], v1, s[{sWS}:{sWS+3}], s3 offen")
    if stamps:
        if "F" in stamps: L("s_waitcnt vmcnt(0)"); stamp(L, "F")
        if not enc: put_stamps(L, 8, 8)
    if enc and enc[0] == "l":
        L.raw(f"s_waitcnt vmcnt(0) lgkmcnt(0)\ns_add_u32 s72, s72, 3000\nL_padl:\ns_memrealtime s[74:75]\ns_waitcnt lgkmcnt(0)\ns_sub_u32 s76, s74, s72\ns_cmp_lt_i32 s76, 0\ns_cbranch_scc1 L_padl")
    if P["padto"]:
        L.raw(f"s_waitcnt vmcnt(0) lgkmcnt(0)\ns_add_u32 s70, s70, {P['padto']*100}\nL_pad:\ns_memrealtime s[72:73]\ns_waitcnt lgkmcnt(0)\ns_sub_u32 s74, s72, s70\ns_cmp_lt_i32 s74, 0\ns_cbranch_scc1 L_pad")
    L.raw("L_end:\ns_endpgm")
    out.append(L.text()); info["loader_instrs"] = nl + len(L.ins)
    body = "\n".join(out)
    txt = f"""{HEADER}; @launch grid=(256,1,1) block=(512,1,1) lds=163840
; produced by my generator script gen2.py; params: {json.dumps({k: P[k] for k in P if k != 'stamps'})}
.amdgcn_target "amdgcn-amd-amdhsa--gfx950"
.text
.globl {NAME}
.p2align 8
.type {NAME},@function
{NAME}:
{body}
.section .rodata,"a"
.p2align 6
.amdhsa_kernel {NAME}
  .amdhsa_next_free_vgpr 256
  .amdhsa_next_free_sgpr 102
  .amdhsa_accum_offset 256
  .amdhsa_group_segment_fixed_size 0
  .amdhsa_kernarg_size 104
  .amdhsa_user_sgpr_count 2
  .amdhsa_user_sgpr_kernarg_segment_ptr 1
  .amdhsa_system_sgpr_workgroup_id_x 1
.end_amdhsa_kernel
"""
    return txt, info

if __name__ == "__main__":
    kw = json.loads(sys.argv[2]) if len(sys.argv) > 2 else {}
    txt, info = gen(**kw)
    open(sys.argv[1], "w").write(txt)
    print(sys.argv[1], info, len(txt))
```
